```python
import torch

def _softmax(x, axis=-1):
    return torch.softmax(x, dim=axis)
def _gelu(x):
    return torch.nn.functional.gelu(x, approximate="tanh")
def _silu(x):
    return torch.nn.functional.silu(x)
def _sigmoid(x):
    return torch.sigmoid(x)
def _layernorm(x, axis=-1, eps=1e-5):
    m = x.mean(dim=axis, keepdim=True)
    v = x.var(dim=axis, keepdim=True, unbiased=False)
    return (x - m) / torch.sqrt(v + eps)
def _scatter_add(tgt, idx, src, axis=0):
    return tgt.clone().index_add_(axis, idx, src)
def _segment_sum(src, seg, n):
    out = torch.zeros((n,) + src.shape[1:], dtype=src.dtype)
    return out.index_add_(0, seg, src)
def _pad(x, pw):
    flat = tuple(v for pair in reversed(pw) for v in pair)
    return torch.nn.functional.pad(x, flat)

kernel_name = 'gated_mix__ssm_conv_h3__glu_gated_bilinear__prompt'

def setup_inputs():

    _w = (lambda a: (lambda t: t.to(torch.bfloat16) if t.is_floating_point() else t)(torch.as_tensor(a)))
    def _A_setup():
        B, S, D = 1, 2048, 512
        ks = 4
        return {
            "q": _w((lambda *s: torch.randn(*s, dtype=torch.bfloat16) * 0.05)(B, S, D)),
            "k": _w((lambda *s: torch.randn(*s, dtype=torch.bfloat16) * 0.05)(B, S, D)),
            "v": _w((lambda *s: torch.randn(*s, dtype=torch.bfloat16) * 0.05)(B, S, D)),
            "shift_k": _w((lambda *s: torch.randn(*s, dtype=torch.bfloat16) * 0.05)(D, ks) * 0.5),
            "ssm_k": _w((lambda *s: torch.randn(*s, dtype=torch.bfloat16) * 0.05)(D, S) * (1.0 / S ** 0.5)),
            "ssm_D": _w((lambda *s: torch.randn(*s, dtype=torch.bfloat16) * 0.05)(D)),
        }
    _A_in = _A_setup()

    def _B_setup():
        B, S, D, F = 1, 2048, 512, 1792
        return {
            "x": _w((lambda *s: torch.randn(*s, dtype=torch.bfloat16) * 0.05)(B, S, D)),
            "w_gate": _w((lambda *s: torch.randn(*s, dtype=torch.bfloat16) * 0.1)(D, F) * (D ** -0.5)),
            "w_up": _w((lambda *s: torch.randn(*s, dtype=torch.bfloat16) * 0.1)(D, F) * (D ** -0.5)),
            "w_down": _w((lambda *s: torch.randn(*s, dtype=torch.bfloat16) * 0.1)(F, D) * (F ** -0.5)),
        }
    _B_in = _B_setup()

    return {
        "A_q": _A_in["q"],
        "A_k": _A_in["k"],
        "A_v": _A_in["v"],
        "A_shift_k": _A_in["shift_k"],
        "A_ssm_k": _A_in["ssm_k"],
        "A_ssm_D": _A_in["ssm_D"],
        "B_x": _B_in["x"],
        "B_w_gate": _B_in["w_gate"],
        "B_w_up": _B_in["w_up"],
        "B_w_down": _B_in["w_down"],
        "gate_w": _w((lambda *s: torch.randn(*s, dtype=torch.bfloat16) * 0.05)(512) * 16.0),
    }

def reference(A_q, A_k, A_v, A_shift_k, A_ssm_k, A_ssm_D, B_x, B_w_gate, B_w_up, B_w_down, gate_w):
    def _A_ref(q, k, v, shift_k, ssm_k, ssm_D):
        B, S, D = q.shape
        ks = shift_k.shape[-1]
        k_pad = _pad(k, ((0, 0), (ks - 1, 0), (0, 0)))
        k_shift = torch.zeros_like(k)
        for t in range(ks):
            k_shift = k_shift + k_pad[:, t:t + S, :] * shift_k[:, ks - 1 - t][None, None, :]
        kv = k_shift * v
        L = 2 * S
        kv_pad = _pad(kv, ((0, 0), (0, S), (0, 0)))
        kf_pad = _pad(ssm_k, ((0, 0), (0, S)))
        kv_f = (lambda x, axes=(-2,-1): torch.fft.rfft2(x.float(), dim=axes))(kv_pad[:, None, :, :], axes=(1, 2))
        kf_f = (lambda x, axes=(-2,-1): torch.fft.rfft2(x.float(), dim=axes))(kf_pad[:, None, :], axes=(1, 2))
        kf_f = (lambda x, *d: x.permute(*d))(kf_f, 1, 2, 0)
        y_f = kv_f * kf_f[None, :, :, :]
        y = (lambda x, s, axes=(-2,-1): torch.fft.irfft2(x, s=s, dim=axes).to(torch.bfloat16))(y_f, (1, L), axes=(1, 2))[:, 0, :S, :]
        y = y + kv * ssm_D[None, None, :]
        return q * y

    def _B_ref(x, w_gate, w_up, w_down):
        g = torch.einsum("bsd,df->bsf", x, w_gate)
        u = torch.einsum("bsd,df->bsf", x, w_up)
        h = g * u
        return torch.einsum("bsf,fd->bsd", h, w_down)

    x = A_q
    g = _sigmoid((x * gate_w).sum(-1, keepdims=True))
    a = _A_ref(x, A_k, A_v, A_shift_k, A_ssm_k, A_ssm_D)
    b = _B_ref(x, B_w_gate, B_w_up, B_w_down)
    return g * a + (1 - g) * b
```

```python
import re

TRANS = ('v_exp_f32', 'v_log_f32', 'v_rcp_f32', 'v_rsq_f32', 'v_sqrt_f32', 'v_sin_f32', 'v_cos_f32')

def regs_of(tok):
    tok = tok.strip()
    tok = tok.lstrip('-')
    m = re.fullmatch(r'abs\((.*)\)', tok)
    if m: tok = m.group(1)
    m = re.fullmatch(r'\|(.*)\|', tok)
    if m: tok = m.group(1)
    m = re.fullmatch(r'([vsa])\[(\d+):(\d+)\]', tok)
    if m:
        return {(m.group(1), i) for i in range(int(m.group(2)), int(m.group(3)) + 1)}
    m = re.fullmatch(r'([vsa])(\d+)', tok)
    if m:
        return {(m.group(1), int(m.group(2)))}
    if tok == 'vcc': return {('s', 'vcc')}
    if tok == 'exec': return {('s', 'exec')}
    if tok == 'm0': return {('s', 'm0')}
    return set()

class Ins:
    def __init__(self, text):
        self.text = text
        t = text.split(';')[0].strip()
        parts = t.split(None, 1)
        self.op = parts[0]
        rest = parts[1] if len(parts) > 1 else ''
        ops = []
        depth = 0; cur = ''
        for ch in rest:
            if ch in '[(': depth += 1
            if ch in '])': depth -= 1
            if ch == ',' and depth == 0:
                ops.append(cur.strip()); cur = ''
            else:
                cur += ch
        if cur.strip(): ops.append(cur.strip())
        self.mods = ''
        if ops:
            last = ops[-1].split(None, 1)
            ops[-1] = last[0]
            if len(last) > 1: self.mods = last[1]
        self.ops = ops
        op = self.op
        self.is_mfma = op.startswith('v_mfma')
        self.is_valu = op.startswith('v_') and not self.is_mfma
        self.is_salu = op.startswith('s_')
        self.is_ds = op.startswith('ds_')
        self.is_vmem = op.startswith(('buffer_', 'global_', 'flat_'))
        self.is_dpp = '_dpp' in op or 'quad_perm' in self.mods or 'row_' in self.mods
        self.is_lds_dma = self.is_vmem and (' lds' in (' ' + self.mods) or 'load_lds' in op)
        self.writes = set(); self.reads = set()
        R = [regs_of(o) for o in ops]
        if self.is_mfma:
            self.writes = R[0]; self.srcA = R[1]; self.srcB = R[2]; self.srcC = R[3]
            self.reads = R[1] | R[2] | R[3]
            self.passes = 8 if '32x32' in op else 4
        elif self.is_valu:
            if op.startswith('v_cmp'):
                self.writes = R[0]; self.reads = set().union(*R[1:])
                if op.startswith('v_cmpx'): self.writes = self.writes | {('s', 'exec')}
            elif op.startswith(('v_add_co', 'v_sub_co', 'v_addc_co', 'v_subb_co', 'v_subrev_co')):
                self.writes = R[0] | R[1]; self.reads = set().union(*R[2:])
            elif op.startswith('v_permlane') and 'swap' in op:
                self.writes = R[0] | R[1]; self.reads = R[0] | R[1]
            elif op == 'v_nop':
                pass
            else:
                self.writes = R[0]; self.reads = set().union(*R[1:]) if len(R) > 1 else set()
                if op.startswith(('v_fmac', 'v_dot2c', 'v_writelane')) or self.is_dpp: self.reads = self.reads | R[0]
        elif self.is_ds:
            if op.startswith('ds_read') or '_rtn' in op or 'permute' in op or 'swizzle' in op:
                self.writes = R[0]; self.reads = set().union(*R[1:])
            else:
                self.reads = set().union(*R)
        elif self.is_vmem:
            if self.is_lds_dma:
                self.reads = set().union(*R) | {('s', 'm0')}
            elif '_load' in op:
                self.writes = R[0]; self.reads = set().union(*R[1:])
            elif R:
                self.reads = set().union(*R)
                if 'atomic' in op and 'sc0' in self.mods: self.writes = R[0]
            self.store_data = set()
            if '_store_dwordx4' in op or '_store_dwordx3' in op:
                self.store_data = R[0] if op.startswith('buffer_') else R[1]
        elif self.is_salu:
            if op.startswith(('s_cmp', 's_cbranch', 's_branch', 's_waitcnt', 's_barrier', 's_nop', 's_endpgm', 's_setprio', 's_sleep', 's_bitcmp')):
                self.reads = set().union(*R) if R else set()
            else:
                self.writes = R[0] if R else set()
                self.reads = set().union(*R[1:]) if len(R) > 1 else set()
                if 'saveexec' in op: self.writes = self.writes | {('s', 'exec')}
    def states(self):
        if self.op == 's_nop': return int(self.ops[0], 0) + 1
        return 1

def vonly(s): return {r for r in s if r[0] in 'va'}
def sonly(s): return {r for r in s if r[0] == 's'}

def need(prev, cur):
    n = 0
    if prev.is_valu:
        wv = vonly(prev.writes); ws = sonly(prev.writes)
        if cur.is_mfma and wv & cur.reads: n = max(n, 2)
        if cur.is_mfma and ('s', 'exec') in ws: n = max(n, 4)
        if cur.op.startswith(('v_readfirstlane', 'v_readlane')):
            if wv & cur.reads: n = max(n, 1)
            if ws & cur.reads: n = max(n, 4)
            if ('s', 'exec') in ws: n = max(n, 4)
        if cur.op.startswith('v_writelane') and (ws & cur.reads or ('s', 'exec') in ws): n = max(n, 4)
        if cur.op.startswith('v_permlane'):
            if wv & cur.reads: n = max(n, 2)
            if ('s', 'exec') in ws: n = max(n, 4)
        if cur.is_valu and cur.is_dpp:
            if wv & cur.reads: n = max(n, 2)
            if ('s', 'exec') in ws: n = max(n, 5)
        if cur.is_vmem and ws & cur.reads: n = max(n, 5)
        if cur.is_valu and ws & cur.reads: n = max(n, 2)
        if cur.is_salu and ws & cur.reads: n = max(n, 1)
        if prev.op.startswith(TRANS) and (cur.is_valu or cur.is_mfma) and wv & cur.reads: n = max(n, 1 if cur.is_valu else 2)
        if ('sdwa' in prev.op or 'op_sel' in prev.mods) and cur.is_valu and wv & (cur.reads | cur.writes): n = max(n, 1)
        if prev.op.startswith('v_dot') and wv & (cur.reads | cur.writes):
            if cur.op == prev.op and len(cur.ops) == 4 and not (wv & (regs_of(cur.ops[1]) | regs_of(cur.ops[2]))): pass
            else: n = max(n, 3)
    if prev.is_mfma:
        p = prev.passes
        D = prev.writes
        if cur.is_mfma:
            if D & (cur.srcA | cur.srcB): n = max(n, {4: 8, 8: 12}[p])
            if D & cur.srcC and not (D == cur.srcC and cur.passes == p): n = max(n, {4: 6, 8: 10}[p])
            if D & cur.writes and not (D == cur.writes and cur.passes == p): n = max(n, {4: 8, 8: 12}[p])
        else:
            if D & (cur.reads | cur.writes): n = max(n, {4: 8, 8: 12}[p])
            if cur.is_valu and prev.srcC & cur.writes: n = max(n, {4: 3, 8: 7}[p])
    if prev.is_salu and ('s', 'm0') in prev.writes and (cur.is_lds_dma or 'addtid' in cur.op): n = max(n, 1)
    if prev.is_vmem and getattr(prev, 'store_data', None):
        if prev.store_data & cur.writes: n = max(n, 2 if cur.is_valu else 1)
    return n

class Asm:
    def __init__(self):
        self.lines = []
        self.hist = []
        self.npad = 0
    def raw(self, text):
        self.lines.append(text)
    def comment(self, text):
        self.lines.append('    ; ' + text)
    def label(self, name, keep_hist=True):
        self.lines.append(name + ':')
    def reset(self):
        self.hist = []
    def __call__(self, text):
        for t in text.strip().split('\n'):
            t = t.strip()
            if not t or t.startswith(';'): continue
            self.emit(t)
    def emit(self, text):
        ins = Ins(text)
        dist = 0; req = 0
        for prev in reversed(self.hist):
            r = need(prev, ins) - dist
            req = max(req, r)
            dist += prev.states()
            if dist >= 20: break
        while req > 0:
            k = min(req, 16)
            nop = Ins('s_nop %d' % (k - 1))
            self.lines.append('    s_nop %d' % (k - 1))
            self.hist.append(nop)
            self.npad += 1
            req -= k
        self.lines.append('    ' + text)
        self.hist.append(ins)
        if len(self.hist) > 40: self.hist = self.hist[-40:]
        if ins.op in ('s_endpgm', 's_branch'): self.hist = []
    def text(self):
        return '\n'.join(self.lines) + '\n'

class Counter:
    def __init__(self, a, name, maxn):
        self.a = a; self.name = name; self.maxn = maxn
        self.q = []
    def issue(self, tag):
        self.q.append(tag)
    def wait(self, tags):
        if isinstance(tags, str): tags = [tags]
        idx = -1
        for i, t in enumerate(self.q):
            if t in tags: idx = i
        if idx < 0: return
        n = len(self.q) - 1 - idx
        n = min(n, self.maxn)
        self.a('s_waitcnt %s(%d)' % (self.name, n))
        self.q = self.q[len(self.q) - n:] if n > 0 else []
    def wait_all(self):
        self.a('s_waitcnt %s(0)' % self.name)
        self.q = []
```

```python
import sys
from asmlib import Asm, Counter

NAME = 'gated_mix__ssm_conv_h3__glu_gated_bilinear__prompt'
H_OFF = 0
UR_OFF = 0x800000
ZT_OFF = 0xA00000
GL_OFF = 0xC00000

HEADER = open('cdna_kernels/%s.s.ref' % NAME).read().split('; Override launch geometry')[0]

def srd(a, d, lo, hi, nrec):
    a('s_mov_b32 s%d, %s' % (d, lo))
    a('s_mov_b32 s%d, %s' % (d + 1, hi))
    a('s_mov_b32 s%d, %s' % (d + 2, nrec))
    a('s_mov_b32 s%d, 0x00020000' % (d + 3))

def srd_add(a, d, base, off, nrec):
    a('s_add_u32 s%d, s%d, %s' % (d, base, off))
    a('s_addc_u32 s%d, s%d, 0' % (d + 1, base + 1))
    a('s_mov_b32 s%d, %s' % (d + 2, nrec))
    a('s_mov_b32 s%d, 0x00020000' % (d + 3))

def kstart(a, name):
    a.raw('.globl %s' % name)
    a.raw('.p2align 8')
    a.raw('.type %s,@function' % name)
    a.raw('%s:' % name)
    a.reset()

def kdesc(name, vgpr, sgpr):
    acc = (vgpr + 3) // 4 * 4
    return '''.amdhsa_kernel %s
  .amdhsa_next_free_vgpr %d
  .amdhsa_next_free_sgpr %d
  .amdhsa_accum_offset %d
  .amdhsa_group_segment_fixed_size 0
  .amdhsa_kernarg_size 112
  .amdhsa_user_sgpr_count 2
  .amdhsa_user_sgpr_kernarg_segment_ptr 1
  .amdhsa_system_sgpr_workgroup_id_x 1
  .amdhsa_float_denorm_mode_32 3
.end_amdhsa_kernel
''' % (name, vgpr, sgpr, acc)

def gen_k1(a):
    kstart(a, 'k1_kernel')
    a('s_cmp_ge_u32 s2, 256')
    a('s_cbranch_scc1 K1_END')
    a('s_load_dwordx4 s[4:7], s[0:1], 0')
    a('s_load_dwordx4 s[8:11], s[0:1], 16')
    a('s_load_dwordx4 s[12:15], s[0:1], 56')
    a('s_load_dwordx2 s[16:17], s[0:1], 80')
    a('s_load_dwordx2 s[18:19], s[0:1], 104')
    a('v_lshrrev_b32 v1, 6, v0')
    a('v_and_b32 v0, 63, v0')
    a('v_readfirstlane_b32 s20, v1')
    a('s_and_b32 s44, s2, 7')
    a('s_lshr_b32 s45, s2, 3')
    a('s_lshr_b32 s21, s44, 1')
    a('s_lshl_b32 s21, s21, 2')
    a('s_and_b32 s46, s45, 3')
    a('s_add_u32 s21, s21, s46')
    a('s_and_b32 s22, s44, 1')
    a('s_mul_i32 s22, s22, 7')
    a('s_lshr_b32 s47, s45, 2')
    a('s_add_u32 s22, s22, s47')
    a('s_lshl_b32 s23, s46, 1')
    a('s_add_u32 s23, s23, s47')
    a('s_and_b32 s23, s23, 7')
    a('s_cmp_ge_u32 s20, 4')
    a('s_cbranch_scc1 K1_LOADER')
    a('s_cmp_ge_u32 s45, 28')
    a('s_cbranch_scc1 K1_END')
    XA = 176; WA = 180; VST = 184
    a('s_setprio 1')
    a('s_and_b32 s48, s20, 1')
    a('s_lshr_b32 s49, s20, 1')
    a('v_and_b32 v1, 31, v0')
    a('v_lshlrev_b32 v1, 7, v1')
    a('s_lshl_b32 s50, s48, 13')
    a('v_add_u32 v1, s50, v1')
    a('v_lshrrev_b32 v2, 5, v0')
    a('v_bfe_u32 v3, v0, 1, 3')
    a('v_xor_b32 v2, v2, v3')
    a('v_lshl_add_u32 v%d, v2, 4, v1' % XA)
    for ks in range(1, 4):
        a('v_xor_b32 v%d, %d, v%d' % (XA + ks, 32 * ks, XA))
    a('v_bfe_u32 v1, v0, 2, 2')
    a('v_lshrrev_b32 v2, 5, v0')
    a('v_lshl_add_u32 v2, v2, 3, v1')
    a('v_lshlrev_b32 v2, 8, v2')
    a('s_lshl_b32 s50, s49, 1')
    a('v_xor_b32 v1, s50, v1')
    a('v_lshl_add_u32 v2, v1, 6, v2')
    a('v_bfe_u32 v1, v0, 4, 1')
    a('v_lshl_add_u32 v2, v1, 5, v2')
    a('v_and_b32 v1, 3, v0')
    a('v_lshl_add_u32 v2, v1, 3, v2')
    a('v_add_u32 v%d, 49152, v2' % (WA + 0))
    a('v_add_u32 v%d, 98304, v2' % (WA + 2))
    a('v_xor_b32 v%d, 64, v%d' % (WA + 1, WA + 0))
    a('v_xor_b32 v%d, 64, v%d' % (WA + 3, WA + 2))
    a('v_lshlrev_b32 v%d, 4, v0' % VST)
    a('s_lshl_b32 s50, s21, 2')
    a('s_lshl_b32 s51, s48, 1')
    a('s_add_u32 s50, s50, s51')
    a('s_mul_i32 s50, s50, 112')
    a('s_lshl_b32 s51, s22, 3')
    a('s_add_u32 s50, s50, s51')
    a('s_lshl_b32 s51, s49, 2')
    a('s_add_u32 s50, s50, s51')
    a('s_lshl_b32 s52, s50, 10')
    a('s_add_u32 s53, s52, %d' % (112 * 1024))
    a('s_waitcnt lgkmcnt(0)')
    srd_add(a, 40, 18, H_OFF, 64 * 112 * 1024)

    lg = Counter(a, 'lgkmcnt', 15)
    def acc(t, fb, gu): return ((t * 2 + fb) * 2 + gu) * 16
    def fr(st, name): return 128 + 24 * st + {'x0': 0, 'x1': 4, 'g0': 8, 'g1': 12, 'u0': 16, 'u1': 20}[name]
    def reads(step):
        c, ks = divmod(step, 4); st = step & 1; so = (c % 3) * 16384
        out = []
        def x(t):
            r = fr(st, 'x%d' % t)
            out.append(('x%d_%d' % (t, step), 'ds_read_b128 v[%d:%d], v%d offset:%d' % (r, r + 3, XA + ks, so + t * 4096)))
        def w(gu, fb):
            nm = 'gu'[gu] + str(fb); r = fr(st, nm)
            for t2 in range(2):
                out.append(('%s_%d' % (nm, step), 'ds_read_b64_tr_b16 v[%d:%d], v%d offset:%d' % (r + 2 * t2, r + 2 * t2 + 1, WA + 2 * gu + fb, so + (16 * ks + 4 * t2) * 256)))
        x(0); w(0, 0); x(1); w(1, 0); w(0, 1); w(1, 1)
        return out
    a('s_barrier')
    for tag, t in reads(0):
        a(t); lg.issue(tag)
    order = [(0, 0, 0), (1, 0, 0), (0, 0, 1), (1, 0, 1), (0, 1, 0), (1, 1, 0), (0, 1, 1), (1, 1, 1)]
    for step in range(32):
        c, ks = divmod(step, 4); st = step & 1
        nxt = reads(step + 1) if step < 31 else []
        boundary = (ks == 3 and step < 31)
        if boundary:
            lg.wait_all()
        for mi, (t, fb, gu) in enumerate(order):
            nm = 'gu'[gu] + str(fb)
            lg.wait(['x%d_%d' % (t, step), '%s_%d' % (nm, step)])
            d = acc(t, fb, gu); A = fr(st, nm); B = fr(st, 'x%d' % t)
            C = '0' if step == 0 else 'v[%d:%d]' % (d, d + 15)
            a('v_mfma_f32_32x32x16_bf16 v[%d:%d], v[%d:%d], v[%d:%d], %s' % (d, d + 15, A, A + 3, B, B + 3, C))
            if boundary and mi == 0:
                continue
            if boundary and mi == 1:
                a('s_barrier')
            for _ in range(2):
                if nxt:
                    tag, tx = nxt.pop(0); a(tx); lg.issue(tag)
        assert not nxt
    for t in range(2):
        for fb in range(2):
            g = acc(t, fb, 0); u = acc(t, fb, 1)
            for r in range(0, 16, 2):
                a('v_pk_mul_f32 v[%d:%d], v[%d:%d], v[%d:%d]' % (g + r, g + r + 1, g + r, g + r + 1, u + r, u + r + 1))
            o = 128 + (t * 2 + fb) * 8
            for r in range(8):
                a('v_cvt_pk_bf16_f32 v%d, v%d, v%d' % (o + r, g + 2 * r, g + 2 * r + 1))
            for e in range(2):
                a('buffer_store_dwordx4 v[%d:%d], v%d, s[40:43], s%d offen offset:%d' % (o + 4 * e, o + 4 * e + 3, VST, 52 + t, (2 * fb + e) * 1024))
    a('s_endpgm')

    a.label('K1_LOADER'); a.reset()
    VX = 2; VW = 6
    a('s_sub_u32 s48, s20, 4')
    a('v_lshrrev_b32 v10, 3, v0')
    a('v_lshlrev_b32 v10, 10, v10')
    a('v_and_b32 v11, 7, v0')
    a('v_lshrrev_b32 v12, 4, v0')
    a('v_xor_b32 v11, v11, v12')
    a('v_lshl_add_u32 v10, v11, 4, v10')
    a('s_lshl_b32 s49, s48, 15')
    a('v_add_u32 v%d, s49, v10' % VX)
    a('v_xor_b32 v10, 64, v%d' % VX)
    a('v_add_u32 v%d, 7168, v10' % (VX + 1))
    a('v_add_u32 v%d, 14336, v%d' % (VX + 2, VX))
    a('v_add_u32 v%d, 21504, v10' % (VX + 3))
    a('v_mul_u32_u24 v10, 3584, v12')
    a('v_and_b32 v11, 15, v0')
    a('v_lshlrev_b32 v13, 2, v12')
    a('v_xor_b32 v11, v11, v13')
    a('v_lshl_add_u32 v10, v11, 4, v10')
    a('s_mul_i32 s49, s48, 57344')
    a('v_add_u32 v%d, s49, v10' % VW)
    for i in range(1, 4):
        a('v_add_u32 v%d, %d, v%d' % (VW + i, 13312 * i, VW))
    a('s_lshl_b32 s50, s48, 12')
    a('s_lshl_b32 s51, s2, 13')
    a('s_lshl_b32 s52, s48, 8')
    a('s_add_u32 s51, s51, s52')
    a('v_lshl_add_u32 v11, v0, 2, s51')
    a('v_subrev_u32 v10, 3072, v11')
    a('v_add_u32 v11, 4096, v11')
    a('s_lshl_b32 s52, s48, 10')
    a('v_lshl_add_u32 v12, v0, 4, s52')
    a('s_lshl_b32 s52, s48, 8')
    a('v_lshl_add_u32 v13, v0, 2, s52')
    a('s_waitcnt lgkmcnt(0)')
    a('s_lshl_b32 s52, s21, 17')
    srd_add(a, 24, 4, 's52', 131072)
    a('s_lshl_b32 s52, s22, 8')
    a('s_sub_u32 s53, %d, s52' % (512 * 3584))
    srd_add(a, 28, 12, 's52', 's53')
    srd_add(a, 32, 14, 's52', 's53')
    srd(a, 36, 's6', 's7', 2048 * 1024)

    vm = Counter(a, 'vmcnt', 63)
    def issue_chunk(n):
        slot = n % 3
        a('s_add_u32 s54, s23, %d' % n)
        a('s_and_b32 s54, s54, 7')
        a('s_lshl_b32 s55, s54, 7')
        a('s_mul_i32 s56, s54, %d' % (64 * 3584))
        for reg, (V, S, so) in enumerate([(VX, 24, 55), (VW, 28, 56), (VW, 32, 56)]):
            a('s_add_u32 m0, s50, %d' % (reg * 49152 + slot * 16384))
            for i in range(4):
                a('buffer_load_dwordx4 v%d, s[%d:%d], s%d offen offset:%d lds' % (V + i, S, S + 3, so, 1024 * i))
                vm.issue('c%d' % n)
    KR = 16; VR = 27; QR = 35; SK = 44; GW = 48
    def prep_loads():
        for i in range(3):
            a('buffer_load_dword v%d, v10, s[36:39], 0 offen offset:%d' % (KR + i, 1024 * i)); vm.issue('p')
        for i in range(8):
            a('global_load_dword v%d, v11, s[6:7] offset:%d' % (KR + 3 + i, 1024 * i - 4096)); vm.issue('p')
        for i in range(8):
            a('global_load_dword v%d, v11, s[8:9] offset:%d' % (VR + i, 1024 * i - 4096)); vm.issue('p')
        for i in range(8):
            a('global_load_dword v%d, v11, s[4:5] offset:%d' % (QR + i, 1024 * i - 4096)); vm.issue('p')
        a('global_load_dwordx4 v[%d:%d], v12, s[10:11]' % (SK, SK + 3)); vm.issue('p')
        a('global_load_dword v%d, v13, s[16:17]' % GW); vm.issue('p')
    a('s_cmp_ge_u32 s45, 28')
    a('s_cbranch_scc1 K1_NOGEMM')
    for n in range(3): issue_chunk(n)
    prep_loads()
    for n in range(8):
        vm.wait('c%d' % n)
        a('s_barrier')
        if 1 <= n <= 5: issue_chunk(n + 2)
    a('s_branch K1_PREP')
    a.label('K1_NOGEMM'); a.reset()
    prep_loads()
    a.label('K1_PREP')
    a('s_waitcnt vmcnt(0)')
    KF = 50; WF = 72; VF = 80; KS = 96; OUT = 112; LG = 120
    for i in range(11):
        a('v_lshlrev_b32 v%d, 16, v%d' % (KF + 2 * i, KR + i))
        a('v_and_b32 v%d, 0xffff0000, v%d' % (KF + 2 * i + 1, KR + i))
    for j in range(4):
        for c in range(2):
            src = SK + 2 * c + (j >> 1)
            if j & 1: a('v_and_b32 v%d, 0xffff0000, v%d' % (WF + 2 * j + c, src))
            else: a('v_lshlrev_b32 v%d, 16, v%d' % (WF + 2 * j + c, src))
    for i in range(8):
        a('v_lshlrev_b32 v%d, 16, v%d' % (VF + 2 * i, VR + i))
        a('v_and_b32 v%d, 0xffff0000, v%d' % (VF + 2 * i + 1, VR + i))
    for j in (3, 2, 1, 0):
        for r in range(8):
            k = KF + 2 * (r + 3 - j); d = KS + 2 * r; w = WF + 2 * j
            if j == 3: a('v_pk_mul_f32 v[%d:%d], v[%d:%d], v[%d:%d]' % (d, d + 1, k, k + 1, w, w + 1))
            else: a('v_pk_fma_f32 v[%d:%d], v[%d:%d], v[%d:%d], v[%d:%d]' % (d, d + 1, k, k + 1, w, w + 1, d, d + 1))
    for r in range(8):
        d = KS + 2 * r; v = VF + 2 * r
        a('v_pk_mul_f32 v[%d:%d], v[%d:%d], v[%d:%d]' % (d, d + 1, d, d + 1, v, v + 1))
    for c in range(2):
        for j in range(4):
            a('v_cvt_pk_bf16_f32 v%d, v%d, v%d' % (OUT + 4 * c + j, KS + 2 * (7 - 2 * j) + c, KS + 2 * (6 - 2 * j) + c))
    a('s_sub_u32 s51, 255, s2')
    a('s_lshl_b32 s51, s51, 13')
    a('s_lshl_b32 s52, s48, 11')
    a('s_add_u32 s51, s51, s52')
    a('s_add_u32 s51, s51, %d' % UR_OFF)
    a('v_lshl_add_u32 v10, v0, 5, s51')
    a('global_store_dwordx4 v10, v[%d:%d], s[18:19]' % (OUT, OUT + 3))
    a('global_store_dwordx4 v10, v[%d:%d], s[18:19] offset:16' % (OUT + 4, OUT + 7))
    for r in range(8):
        a('v_dot2_f32_bf16 v%d, v%d, v%d, 0' % (LG + r, QR + r, GW))
    for m in ('quad_perm:[1,0,3,2] row_mask:0xf', 'quad_perm:[2,3,0,1] row_mask:0xf', 'row_half_mirror row_mask:0xf', 'row_mirror row_mask:0xf',
              'row_bcast:15 row_mask:0xa', 'row_bcast:31 row_mask:0xc'):
        for r in range(8):
            a('v_add_f32_dpp v%d, v%d, v%d %s bank_mask:0xf' % (LG + r, LG + r, LG + r, m))
    a('s_lshl_b32 s51, s48, 13')
    a('s_lshl_b32 s52, s2, 5')
    a('s_add_u32 s51, s51, s52')
    a('s_add_u32 s51, s51, %d' % GL_OFF)
    a('v_mov_b32 v10, s51')
    a('s_mov_b32 exec_lo, 0')
    a('s_mov_b32 exec_hi, 0x80000000')
    a('global_store_dwordx4 v10, v[%d:%d], s[18:19]' % (LG, LG + 3))
    a('global_store_dwordx4 v10, v[%d:%d], s[18:19] offset:16' % (LG + 4, LG + 7))
    a.label('K1_END')
    a('s_endpgm')

CS = 4160; URL = 4 * CS; CHS = URL + 4608; EXCH = 2 * CHS
def gen_k2(a):
    kstart(a, 'k2_kernel')
    a('s_cmp_ge_u32 s2, 256')
    a('s_cbranch_scc1 K2_END')
    a('s_load_dwordx4 s[4:7], s[0:1], 32')
    a('s_load_dwordx2 s[18:19], s[0:1], 104')
    a('v_lshrrev_b32 v1, 6, v0')
    a('v_and_b32 v0, 63, v0')
    a('v_readfirstlane_b32 s20, v1')
    a('s_and_b32 s21, s2, 7')
    a('s_lshl_b32 s21, s21, 5')
    a('s_lshr_b32 s22, s2, 3')
    a('s_add_u32 s21, s21, s22')
    a('s_lshr_b32 s22, s20, 1')
    a('s_and_b32 s23, s20, 1')
    a('s_lshl_b32 s24, s21, 1')
    a('s_add_u32 s24, s24, s22')
    a('s_mul_i32 s25, s22, %d' % CHS)
    a('s_lshl_b32 s26, s23, 11')
    a('v_lshl_add_u32 v2, v0, 4, s26')
    a('v_subrev_u32 v3, 8, v2')
    a('v_add_u32 v4, 1016, v2')
    a('s_lshl_b32 s27, s23, 20')
    a('s_lshl_b32 s28, s24, 4')
    a('s_add_u32 s27, s27, s28')
    a('v_lshl_add_u32 v5, v0, 13, s27')
    a('v_add_u32 v6, %d, v5' % (64 * 8192))
    a('s_lshl_b32 s28, s21, 2')
    a('s_waitcnt lgkmcnt(0)')
    a('s_load_dword s29, s[6:7], s28')
    a('s_lshl_b32 s28, s24, 12')
    srd_add(a, 8, 4, 's28', 4096)
    srd_add(a, 12, 18, UR_OFF, 2 << 20)
    R = [16, 24]
    a('buffer_load_dwordx2 v[%d:%d], v3, s[8:11], 0 offen' % (R[0], R[0] + 1))
    a('buffer_load_dwordx4 v[%d:%d], v2, s[8:11], 0 offen' % (R[0] + 2, R[0] + 5))
    a('buffer_load_dwordx2 v[%d:%d], v4, s[8:11], 0 offen' % (R[1], R[1] + 1))
    a('buffer_load_dwordx4 v[%d:%d], v2, s[8:11], 0 offen offset:1024' % (R[1] + 2, R[1] + 5))
    a('s_add_u32 s30, s25, s26')
    a('s_add_u32 m0, s30, %d' % URL)
    a('buffer_load_dwordx4 v5, s[12:15], 0 offen lds')
    a('s_add_u32 m0, s30, %d' % (URL + 1024))
    a('buffer_load_dwordx4 v6, s[12:15], 0 offen lds')
    a('v_lshrrev_b32 v7, 1, v0')
    a('v_mul_u32_u24 v7, %d, v7' % CS)
    a('v_and_b32 v8, 1, v0')
    a('v_lshl_add_u32 v7, v8, 4, v7')
    a('v_subrev_u32 v8, 8, v0')
    a('v_and_b32 v8, 31, v8')
    a('v_lshlrev_b32 v8, 4, v8')
    a('v_add_u32 v8, %d, v8' % (URL + 4096))
    a('v_cmp_gt_u32 vcc, 8, v0')
    a('v_cndmask_b32 v7, v8, v7, vcc')
    a('v_add_u32 v7, s25, v7')
    for i in range(4): a('v_mov_b32 v%d, 0' % (32 + i))
    a('ds_write_b128 v7, v[32:35]')
    a('s_add_u32 s31, s25, 32')
    a('v_add_u32 v9, s31, v2')
    a('v_not_b32 v10, v0')
    a('v_and_b32 v10, 3, v10')
    a('v_mul_u32_u24 v10, %d, v10' % CS)
    a('v_lshrrev_b32 v11, 4, v0')
    a('v_lshl_add_u32 v10, v11, 4, v10')
    a('v_bfe_u32 v12, v0, 2, 2')
    a('v_lshl_add_u32 v10, v12, 3, v10')
    a('s_lshl_b32 s31, s23, 8')
    a('s_add_u32 s31, s31, s25')
    a('s_add_u32 s32, s31, 8')
    a('v_add_u32 v10, s32, v10')
    a('v_and_b32 v12, 15, v0')
    a('v_lshlrev_b32 v12, 5, v12')
    a('v_lshlrev_b32 v13, 4, v11')
    a('v_sub_u32 v13, v13, v12')
    a('s_add_u32 s32, s31, %d' % (URL + 480))
    a('v_add_u32 v13, s32, v13')
    for i in range(2):
        r = R[i]
        a('s_waitcnt vmcnt(%d)' % (4 - 2 * i))
        for j in range(4):
            a('v_alignbit_b32 v%d, v%d, v%d, 16' % (36 + j, r + 2 + j, r + 1 + j))
        for j in range(4):
            a('v_mov_b32 v%d, v%d' % (40 + j, r + 1 + j))
        for j in range(4):
            a('v_alignbit_b32 v%d, v%d, v%d, 16' % (44 + j, r + 1 + j, r + j))
        a('ds_write_b128 v9, v[%d:%d] offset:%d' % (r + 2, r + 5, 1024 * i))
        a('ds_write_b128 v9, v[36:39] offset:%d' % (1024 * i + CS))
        a('ds_write_b128 v9, v[40:43] offset:%d' % (1024 * i + 2 * CS))
        a('ds_write_b128 v9, v[44:47] offset:%d' % (1024 * i + 3 * CS))
        if i == 0: a('s_waitcnt lgkmcnt(0)')
    a('s_waitcnt vmcnt(0) lgkmcnt(0)')
    a('s_barrier')
    Y = 48; TB = [80, 144]; FB = [112, 176]
    lg = Counter(a, 'lgkmcnt', 15)
    def reads(rp):
        st = rp & 1; out = []
        for i in range(8):
            t = TB[st] + 4 * i; f = FB[st] + 4 * i
            out.append(('T%d_%d' % (i, rp), 'ds_read_b64 v[%d:%d], v10 offset:%d' % (t, t + 1, 512 * i + 64 * rp)))
            out.append(('T%d_%d' % (i, rp), 'ds_read_b64 v[%d:%d], v10 offset:%d' % (t + 2, t + 3, 512 * i + 64 * rp + 8)))
            out.append(('F%d_%d' % (i, rp), 'ds_read_b128 v[%d:%d], v13 offset:%d' % (f, f + 3, 3584 - 512 * i + 64 * rp)))
        return out
    for tag, t in reads(0):
        a(t); lg.issue(tag)
    pairs = sorted([(c, nu) for c in range(8) for nu in range(8) if c + nu <= 7], key=lambda p: (max(p), p))
    for rp in range(4):
        st = rp & 1
        nxt = reads(rp + 1) if rp < 3 else []
        seen = set()
        for (c, nu) in pairs:
            lg.wait(['T%d_%d' % (c, rp), 'F%d_%d' % (nu, rp)])
            A = c + nu; d = Y + 4 * A
            C = '0' if (rp == 0 and A not in seen) else 'v[%d:%d]' % (d, d + 3)
            seen.add(A)
            t = TB[st] + 4 * c; f = FB[st] + 4 * nu
            a('v_mfma_f32_16x16x32_bf16 v[%d:%d], v[%d:%d], v[%d:%d], %s' % (d, d + 3, t, t + 3, f, f + 3, C))
            if nxt and not (rp == 0 and len(lg.q) > 8):
                tag, tx = nxt.pop(0); a(tx); lg.issue(tag)
        while nxt:
            tag, tx = nxt.pop(0); a(tx); lg.issue(tag)
    a('s_lshl_b32 s31, s20, 13')
    a('s_add_u32 s31, s31, %d' % EXCH)
    a('v_lshl_add_u32 v2, v0, 4, s31')
    for A in range(8):
        a('ds_write_b128 v2, v[%d:%d] offset:%d' % (Y + 4 * A, Y + 4 * A + 3, 1024 * A))
    a('s_lshl_b32 s31, s22, 14')
    a('s_lshl_b32 s32, s23, 12')
    a('s_add_u32 s31, s31, s32')
    a('s_add_u32 s31, s31, %d' % EXCH)
    a('v_lshl_add_u32 v3, v0, 4, s31')
    a('s_lshl_b32 s32, s23, 11')
    a('s_sub_u32 s32, s25, s32')
    a('s_add_u32 s32, s32, %d' % (URL + 4088 - 1536))
    a('v_lshl_add_u32 v4, v11, 3, v12')
    a('v_sub_u32 v5, s32, v4')
    a('s_lshl_b32 s31, s24, 12')
    a('s_lshl_b32 s32, s23, 11')
    a('s_add_u32 s31, s31, s32')
    a('s_add_u32 s31, s31, %d' % ZT_OFF)
    a('v_add_u32 v6, s31, v4')
    a('s_lshl_b32 s33, s29, 16')
    a('s_and_b32 s29, s29, 0xffff0000')
    a('s_cmp_eq_u32 s22, 0')
    a('s_cselect_b32 s29, s33, s29')
    a('s_waitcnt lgkmcnt(0)')
    a('s_barrier')
    for i in range(4):
        a('ds_read_b128 v[%d:%d], v3 offset:%d' % (80 + 4 * i, 83 + 4 * i, 1024 * i))
        a('ds_read_b128 v[%d:%d], v3 offset:%d' % (96 + 4 * i, 99 + 4 * i, 1024 * i + 8192))
        a('ds_read_b64 v[%d:%d], v5 offset:%d' % (112 + 2 * i, 113 + 2 * i, 1536 - 512 * i))
    for i in range(4):
        a('s_waitcnt lgkmcnt(%d)' % (9 - 3 * i))
        y = 80 + 4 * i; y2 = 96 + 4 * i; kv = 112 + 2 * i
        a('v_and_b32 v120, 0xffff0000, v%d' % (kv + 1))
        a('v_lshlrev_b32 v121, 16, v%d' % (kv + 1))
        a('v_and_b32 v122, 0xffff0000, v%d' % kv)
        a('v_lshlrev_b32 v123, 16, v%d' % kv)
        for r in range(4):
            a('v_add_f32 v%d, v%d, v%d' % (y + r, y + r, y2 + r))
        for r in range(4):
            a('v_fmac_f32 v%d, s29, v%d' % (y + r, 120 + r))
        a('v_cvt_pk_bf16_f32 v%d, v%d, v%d' % (124 + 2 * i, y, y + 1))
        a('v_cvt_pk_bf16_f32 v%d, v%d, v%d' % (125 + 2 * i, y + 2, y + 3))
        a('global_store_dwordx2 v6, v[%d:%d], s[18:19] offset:%d' % (124 + 2 * i, 125 + 2 * i, 512 * i))
    a.label('K2_END')
    a('s_endpgm')

PU = 1088; PS = 16 * PU
AUX = 5 * PS; OMG = AUX + 16384; K3_LDS = OMG + 256
NS = 8
def gen_k3(a):
    kstart(a, 'k3_kernel')
    a('s_cmp_ge_u32 s2, 256')
    a('s_cbranch_scc1 K3_END')
    a('s_load_dwordx2 s[4:5], s[0:1], 0')
    a('s_load_dwordx2 s[6:7], s[0:1], 72')
    a('s_load_dwordx2 s[16:17], s[0:1], 88')
    a('s_load_dwordx2 s[18:19], s[0:1], 104')
    a('v_lshrrev_b32 v1, 6, v0')
    a('v_and_b32 v0, 63, v0')
    a('v_readfirstlane_b32 s20, v1')
    a('s_and_b32 s44, s2, 7')
    a('s_lshr_b32 s45, s2, 3')
    a('s_lshr_b32 s21, s44, 1')
    a('s_lshl_b32 s21, s21, 3')
    a('s_and_b32 s46, s45, 7')
    a('s_add_u32 s21, s21, s46')
    a('s_and_b32 s22, s44, 1')
    a('s_lshl_b32 s22, s22, 2')
    a('s_lshr_b32 s47, s45, 3')
    a('s_add_u32 s22, s22, s47')
    a('s_cmp_ge_u32 s20, 4')
    a('s_cbranch_scc1 K3_AUX')
    a('s_mul_i32 s23, s47, 7')
    a('s_mul_i32 s24, s46, 7')
    a('s_lshr_b32 s24, s24, 1')
    a('s_add_u32 s23, s23, s24')
    a('s_sub_u32 s24, s23, 28')
    a('s_cmp_ge_u32 s23, 28')
    a('s_cselect_b32 s23, s24, s23')
    a('s_mul_i32 s25, s20, 28')
    a('s_add_u32 s26, s25, 28')
    a('s_add_u32 s27, s25, s23')
    a('s_mul_i32 s28, s20, %d' % PS)
    VH = 2; VWD = 4; VTR = 6
    a('v_lshlrev_b32 v%d, 4, v0' % VH)
    a('v_add_u32 v%d, %d, v%d' % (VH + 1, 112 * 1024, VH))
    a('v_lshrrev_b32 v8, 3, v0')
    a('v_lshlrev_b32 v8, 10, v8')
    a('v_bfe_u32 v9, v0, 4, 1')
    a('v_lshlrev_b32 v10, 2, v9')
    a('v_and_b32 v11, 7, v0')
    a('v_xor_b32 v10, v10, v11')
    a('v_lshl_add_u32 v%d, v10, 4, v8' % VWD)
    a('v_add_u32 v%d, 7168, v%d' % (VWD + 1, VWD))
    a('v_bfe_u32 v8, v0, 2, 2')
    a('v_lshrrev_b32 v10, 5, v0')
    a('v_lshl_add_u32 v10, v10, 2, v8')
    a('v_lshlrev_b32 v10, 7, v10')
    a('v_lshrrev_b32 v8, 1, v8')
    a('v_lshl_add_u32 v10, v8, 6, v10')
    a('v_lshl_add_u32 v10, v9, 5, v10')
    a('v_and_b32 v8, 3, v0')
    a('v_lshl_add_u32 v10, v8, 3, v10')
    a('v_add_u32 v%d, s28, v10' % VTR)
    a('v_xor_b32 v10, 64, v10')
    a('v_add_u32 v%d, s28, v10' % (VTR + 1))
    a('s_waitcnt lgkmcnt(0)')
    a('s_mul_i32 s29, s21, %d' % (2 * 112 * 1024))
    a('s_add_u32 s29, s29, %d' % H_OFF)
    srd_add(a, 8, 18, 's29', 2 * 112 * 1024)
    a('s_lshl_b32 s29, s22, 7')
    a('s_sub_u32 s30, %d, s29' % (1792 * 1024))
    srd_add(a, 12, 6, 's29', 's30')
    ACC = 16; HB = 80; WB = 144
    vm = Counter(a, 'vmcnt', 63); lg = Counter(a, 'lgkmcnt', 15)
    def issue(i):
        sl = i % NS
        a('s_lshl_b32 s31, s27, 10')
        a('s_lshl_b32 s32, s27, 14')
        a('s_add_u32 m0, s28, %d' % (sl * 2048))
        for t in range(2):
            h = HB + 8 * sl + 4 * t
            a('buffer_load_dwordx4 v[%d:%d], v%d, s[8:11], s31 offen' % (h, h + 3, VH + t)); vm.issue('s%d' % i)
        for t in range(2):
            a('buffer_load_dwordx4 v%d, s[12:15], s32 offen offset:%d lds' % (VWD + t, 1024 * t)); vm.issue('s%d' % i)
        a('s_add_u32 s27, s27, 1')
        a('s_cmp_ge_u32 s27, s26')
        a('s_cselect_b32 s27, s25, s27')
    def trreads(i):
        sl = i % NS; st = i & 1
        for db in range(2):
            for t2 in range(2):
                w = WB + 8 * st + 4 * db + 2 * t2
                a('ds_read_b64_tr_b16 v[%d:%d], v%d offset:%d' % (w, w + 1, VTR + db, sl * 2048 + t2 * 1024)); lg.issue('w%d' % i)
    for i in range(NS): issue(i)
    vm.wait('s0'); trreads(0)
    for i in range(28):
        sl = i % NS; st = i & 1
        if i + 1 < 28:
            vm.wait('s%d' % (i + 1)); trreads(i + 1)
        lg.wait('w%d' % i)
        for t in range(2):
            for db in range(2):
                d = ACC + 16 * (2 * t + db); w = WB + 8 * st + 4 * db; h = HB + 8 * sl + 4 * t
                C = '0' if i == 0 else 'v[%d:%d]' % (d, d + 15)
                a('v_mfma_f32_32x32x16_bf16 v[%d:%d], v[%d:%d], v[%d:%d], %s' % (d, d + 15, w, w + 3, h, h + 3, C))
        if i + NS < 28: issue(i + NS)
    a('v_lshl_add_u32 v8, v0, 4, s28')
    for u in range(16):
        a('ds_write_b128 v8, v[%d:%d] offset:%d' % (ACC + 4 * u, ACC + 4 * u + 3, u * PU))
    a('s_branch K3_FINAL')
    a.label('K3_AUX'); a.reset()
    a('s_sub_u32 s23, s20, 4')
    a('s_lshr_b32 s24, s23, 1')
    a('s_and_b32 s25, s23, 1')
    a('s_lshl_b32 s26, s21, 1')
    a('s_add_u32 s26, s26, s24')
    a('s_lshl_b32 s27, s22, 1')
    a('s_add_u32 s27, s27, s25')
    a('s_lshl_b32 s28, s23, 12')
    a('s_add_u32 s28, s28, %d' % AUX)
    a('v_lshrrev_b32 v2, 2, v0')
    a('v_and_b32 v3, 3, v0')
    a('v_lshlrev_b32 v3, 4, v3')
    a('v_lshl_add_u32 v4, v2, 10, v3')
    a('v_add_u32 v5, %d, v4' % (16384 - 1024))
    a('v_lshl_add_u32 v6, v2, 12, v3')
    a('v_add_u32 v7, %d, v6' % (65536 - 1024))
    a('v_and_b32 v8, 31, v0')
    a('s_lshl_b32 s29, s26, 7')
    a('s_add_u32 s29, s29, %d' % GL_OFF)
    a('v_lshl_add_u32 v9, v8, 2, s29')
    a('v_add_u32 v10, 8192, v9')
    a('v_add_u32 v11, 16384, v9')
    a('v_add_u32 v12, 24576, v9')
    a('s_waitcnt lgkmcnt(0)')
    a('s_lshl_b32 s29, s26, 15')
    a('s_lshl_b32 s30, s27, 6')
    a('s_add_u32 s29, s29, s30')
    srd_add(a, 8, 4, 's29', 32768)
    a('s_lshl_b32 s29, s27, 17')
    a('s_lshl_b32 s30, s26, 6')
    a('s_add_u32 s29, s29, s30')
    a('s_add_u32 s29, s29, %d' % ZT_OFF)
    srd_add(a, 12, 18, 's29', 131072)
    for p in range(4):
        a('global_load_dword v%d, v%d, s[18:19]' % (16 + p, 9 + p))
    a('s_mov_b32 m0, s28')
    a('buffer_load_dwordx4 v4, s[8:11], 0 offen lds')
    a('buffer_load_dwordx4 v5, s[8:11], 0 offen offset:1024 lds')
    a('s_add_u32 m0, s28, 2048')
    a('buffer_load_dwordx4 v6, s[12:15], 0 offen lds')
    a('buffer_load_dwordx4 v7, s[12:15], 0 offen offset:1024 lds')
    a('v_lshrrev_b32 v2, 5, v0')
    a('v_lshlrev_b32 v3, 6, v8')
    a('v_lshl_add_u32 v3, v2, 3, v3')
    a('v_add_u32 v3, s28, v3')
    a('v_bfe_u32 v4, v0, 2, 2')
    a('v_lshl_add_u32 v4, v2, 2, v4')
    a('v_lshlrev_b32 v4, 6, v4')
    a('v_bfe_u32 v5, v0, 4, 1')
    a('v_lshl_add_u32 v4, v5, 5, v4')
    a('v_and_b32 v5, 3, v0')
    a('v_lshl_add_u32 v4, v5, 3, v4')
    a('v_add_u32 v4, s28, v4')
    a('s_waitcnt vmcnt(4)')
    a('v_add_f32 v16, v16, v17')
    a('v_add_f32 v18, v18, v19')
    a('v_add_f32 v16, v16, v18')
    a('v_mul_f32 v16, 0xbfb8aa3b, v16')
    a('v_exp_f32 v16, v16')
    a('v_add_f32 v16, 1.0, v16')
    a('v_rcp_f32 v16, v16')
    a('v_sub_f32 v17, 1.0, v16')
    a('s_lshl_b32 s29, s24, 7')
    a('s_add_u32 s29, s29, %d' % OMG)
    a('v_lshl_add_u32 v5, v8, 2, s29')
    a('ds_write_b32 v5, v17')
    a('s_waitcnt vmcnt(0)')
    for j in range(4):
        a('ds_read_b64 v[%d:%d], v3 offset:%d' % (20 + 2 * j, 21 + 2 * j, 16 * j))
        a('ds_read_b64_tr_b16 v[%d:%d], v4 offset:%d' % (28 + 2 * j, 29 + 2 * j, 2048 + 512 * j))
    a('s_mul_i32 s29, s23, %d' % (4 * PU))
    a('s_add_u32 s29, s29, %d' % (4 * PS))
    a('v_lshl_add_u32 v6, v0, 4, s29')
    a('s_waitcnt lgkmcnt(0)')
    for j in range(4):
        o = 40 + 4 * j
        for e in range(2):
            qq = 20 + 2 * j + e; zz = 28 + 2 * j + e
            a('v_lshlrev_b32 v36, 16, v%d' % qq)
            a('v_and_b32 v37, 0xffff0000, v%d' % qq)
            a('v_lshlrev_b32 v38, 16, v%d' % zz)
            a('v_and_b32 v39, 0xffff0000, v%d' % zz)
            a('v_mul_f32 v36, v36, v38')
            a('v_mul_f32 v37, v37, v39')
            a('v_mul_f32 v%d, v16, v36' % (o + 2 * e))
            a('v_mul_f32 v%d, v16, v37' % (o + 2 * e + 1))
        a('ds_write_b128 v6, v[%d:%d] offset:%d' % (o, o + 3, j * PU))
    a.label('K3_FINAL'); a.reset()
    a('s_nop 1')
    a('s_lshr_b32 s29, s20, 2')
    a('s_mul_i32 s29, s29, %d' % (8 * PU))
    a('s_and_b32 s30, s20, 3')
    a('s_lshl_b32 s30, s30, 7')
    a('s_add_u32 s29, s29, s30')
    a('v_and_b32 v2, 7, v0')
    a('v_mul_u32_u24 v3, %d, v2' % PU)
    a('v_lshrrev_b32 v4, 3, v0')
    a('v_lshl_add_u32 v3, v4, 4, v3')
    a('v_add_u32 v3, s29, v3')
    a('v_add_u32 v7, %d, v3' % (3 * PS))
    a('s_lshl_b32 s29, s20, 5')
    a('s_add_u32 s29, s29, %d' % OMG)
    a('v_lshl_add_u32 v5, v4, 2, s29')
    a('s_lshl_b32 s29, s21, 16')
    a('s_lshl_b32 s30, s20, 13')
    a('s_add_u32 s29, s29, s30')
    a('s_lshl_b32 s30, s22, 7')
    a('s_add_u32 s29, s29, s30')
    a('v_lshlrev_b32 v6, 10, v4')
    a('v_lshl_add_u32 v6, v2, 4, v6')
    a('v_add_u32 v6, s29, v6')
    a('s_waitcnt lgkmcnt(0)')
    a('s_barrier')
    for p in range(5):
        for hf in range(2):
            r = 16 + 8 * p + 4 * hf
            if p < 3: a('ds_read_b128 v[%d:%d], v3 offset:%d' % (r, r + 3, p * PS + hf * 512))
            else: a('ds_read_b128 v[%d:%d], v7 offset:%d' % (r, r + 3, (p - 3) * PS + hf * 512))
    a('ds_read_b32 v8, v5')
    a('s_waitcnt lgkmcnt(7)')
    for r in range(0, 8, 2): a('v_pk_add_f32 v[%d:%d], v[%d:%d], v[%d:%d]' % (16 + r, 17 + r, 16 + r, 17 + r, 24 + r, 25 + r))
    a('s_waitcnt lgkmcnt(3)')
    for r in range(0, 8, 2): a('v_pk_add_f32 v[%d:%d], v[%d:%d], v[%d:%d]' % (32 + r, 33 + r, 32 + r, 33 + r, 40 + r, 41 + r))
    for r in range(0, 8, 2): a('v_pk_add_f32 v[%d:%d], v[%d:%d], v[%d:%d]' % (16 + r, 17 + r, 16 + r, 17 + r, 32 + r, 33 + r))
    a('s_waitcnt lgkmcnt(0)')
    for r in range(8): a('v_fmac_f32 v%d, v8, v%d' % (48 + r, 16 + r))
    for r in range(4): a('v_cvt_pk_bf16_f32 v%d, v%d, v%d' % (56 + r, 48 + 2 * r, 49 + 2 * r))
    a('global_store_dwordx4 v6, v[56:59], s[16:17]')
    a.label('K3_END')
    a('s_endpgm')

def main():
    a = Asm()
    out = HEADER
    out += '; @launch kernel=k1_kernel grid=(256,1,1) block=(512,1,1) lds=147456\n'
    out += '; @launch kernel=k2_kernel grid=(256,1,1) block=(256,1,1) lds=%d\n' % (EXCH + 32768)
    out += '; @launch kernel=k3_kernel grid=(256,1,1) block=(512,1,1) lds=%d\n' % K3_LDS
    out += '.amdgcn_target "amdgcn-amd-amdhsa--gfx950"\n.text\n'
    gen_k1(a); gen_k2(a); gen_k3(a)
    out += a.text()
    out += '.section .rodata,"a"\n.p2align 6\n' + kdesc('k1_kernel', 192, 64)
    out += '.p2align 6\n' + kdesc('k2_kernel', 208, 64)
    out += '.p2align 6\n' + kdesc('k3_kernel', 160, 64)
    path = sys.argv[1] if len(sys.argv) > 1 else 'cdna_kernels/%s.s' % NAME
    open(path, 'w').write(out)
    print('wrote', path, 'nops inserted:', a.npad)

main()
```

```python
import sys
from asmlib import Asm, Counter

NAME = 'gated_mix__ssm_conv_h3__glu_gated_bilinear__prompt'
HEADER = open('cdna_kernels/%s.s.ref' % NAME).read().split('; Override launch geometry')[0]
PROF = '--prof' in sys.argv
def opt(name, default):
    for s in sys.argv[1:]:
        if s.startswith('--%s=' % name): return type(default)(s.split('=', 1)[1])
    return default

H_OFF = 0
UR_OFF = 0x800000
ZT_OFF = 0xA00000
GL_OFF = 0xC00000
FL_OFF = 0xC10000
ST_OFF = 0xD00000

def srd(a, d, lo, hi, nrec):
    a('s_mov_b32 s%d, %s' % (d, lo))
    a('s_mov_b32 s%d, %s' % (d + 1, hi))
    a('s_mov_b32 s%d, %s' % (d + 2, nrec))
    a('s_mov_b32 s%d, 0x00020000' % (d + 3))

def srd_add(a, d, base, off, nrec):
    a('s_add_u32 s%d, s%d, %s' % (d, base, off))
    a('s_addc_u32 s%d, s%d, 0' % (d + 1, base + 1))
    a('s_mov_b32 s%d, %s' % (d + 2, nrec))
    a('s_mov_b32 s%d, 0x00020000' % (d + 3))

class Stamps:
    def __init__(self, a, kidx): self.a = a; self.kidx = kidx
    def start(self):
        if not PROF: return
        self.a('s_memrealtime s[64:65]'); self.a('s_memtime s[66:67]')
    def mark(self, i, real=False):
        if not PROF: return
        assert 2 <= i < 13
        self.a('%s s[%d:%d]' % ('s_memrealtime' if real else 's_memtime', 64 + 2 * i, 65 + 2 * i))
    def flush(self, vbase, wave_sgpr='s20'):
        if not PROF: return
        a = self.a
        a('s_waitcnt vmcnt(0) lgkmcnt(0)')
        a('s_memrealtime s[94:95]')
        a('s_memtime s[92:93]')
        a('s_getreg_b32 s90, hwreg(HW_REG_XCC_ID)')
        a('s_getreg_b32 s91, hwreg(HW_REG_HW_ID)')
        a('s_lshl_b32 s90, s90, 28')
        a('s_and_b32 s91, s91, 0xfffffff')
        a('s_or_b32 s90, s90, s91')
        a('s_waitcnt lgkmcnt(0)')
        a('s_mov_b64 exec, 1')
        for i in range(16): a('v_mov_b32 v%d, s%d' % (vbase + i, 64 + 2 * i))
        a('s_lshl_b32 s96, s2, 3')
        a('s_add_u32 s96, s96, %s' % wave_sgpr)
        a('s_lshl_b32 s96, s96, 6')
        a('s_add_u32 s96, s96, %d' % (ST_OFF + self.kidx * 0x20000))
        a('v_mov_b32 v%d, s96' % (vbase + 16))
        for i in range(4):
            a('global_store_dwordx4 v%d, v[%d:%d], s[18:19] offset:%d' % (vbase + 16, vbase + 4 * i, vbase + 4 * i + 3, 16 * i))

def kstart(a, name):
    a.raw('.globl %s' % name)
    a.raw('.p2align 8')
    a.raw('.type %s,@function' % name)
    a.raw('%s:' % name)
    a.reset()

def kdesc(name, vgpr, sgpr):
    acc = (vgpr + 3) // 4 * 4
    if PROF: sgpr = 102
    return '''.p2align 6
.amdhsa_kernel %s
  .amdhsa_next_free_vgpr %d
  .amdhsa_next_free_sgpr %d
  .amdhsa_accum_offset %d
  .amdhsa_group_segment_fixed_size 0
  .amdhsa_kernarg_size 112
  .amdhsa_user_sgpr_count 2
  .amdhsa_user_sgpr_kernarg_segment_ptr 1
  .amdhsa_system_sgpr_workgroup_id_x 1
  .amdhsa_float_denorm_mode_32 3
.end_amdhsa_kernel
''' % (name, vgpr, sgpr, acc)

def outpath():
    return sys.argv[1] if len(sys.argv) > 1 and not sys.argv[1].startswith('--') else 'cdna_kernels/%s.s' % NAME
```

```python
from common import *

HSC1 = opt('hsc1', 1)
NS = opt('ns', 5)
LEAD = opt('lead', 8)
ENGG0 = opt('engg0', 1)
ENGWD = opt('engwd', 7)
KVT = 147456
K1_LDS = KVT + 8192

def gen_k1(a):
    kstart(a, 'k1_kernel')
    a('s_cmp_ge_u32 s2, 256')
    a('s_cbranch_scc1 K1_END')
    S = Stamps(a, 0); S.start()
    a('s_load_dwordx8 s[4:11], s[0:1], 0')
    a('s_load_dwordx8 s[24:31], s[0:1], 56')
    a('s_load_dwordx2 s[16:17], s[0:1], 32')
    a('s_load_dwordx2 s[18:19], s[0:1], 104')
    a('v_lshrrev_b32 v1, 6, v0')
    a('v_and_b32 v0, 63, v0')
    a('v_readfirstlane_b32 s20, v1')
    a('s_and_b32 s58, s2, 7')
    a('s_lshr_b32 s59, s2, 3')
    a('s_sub_u32 s62, s59, 4')
    a('s_lshr_b32 s21, s58, 1')
    a('s_lshl_b32 s21, s21, 2')
    a('s_and_b32 s60, s62, 3')
    a('s_add_u32 s21, s21, s60')
    a('s_and_b32 s22, s58, 1')
    a('s_mul_i32 s22, s22, 7')
    a('s_lshr_b32 s61, s62, 2')
    a('s_add_u32 s22, s22, s61')
    a('s_sub_u32 s48, s20, 4')
    a('s_cmp_lt_u32 s20, 4')
    a('s_cbranch_scc1 K1_COMPUTE')
    a('s_cmp_ge_u32 s59, 4')
    a('s_cbranch_scc1 K1_LOADER')
    a('s_cmp_eq_u32 s20, 4')
    a('s_cbranch_scc1 K1_ENG')
    a('s_getpc_b64 s[12:13]')
    a.label('K1_PC0')
    a('s_sub_u32 s50, s20, 5')
    a('s_lshl_b32 s50, s50, 13')
    a('v_lshl_add_u32 v8, v0, 7, s50')
    a('v_min_u32 v8, K1_END-K1_PC0, v8')
    a('global_load_dword v9, v8, s[12:13]')
    a('s_waitcnt lgkmcnt(0)')
    a('s_barrier')
    a('s_branch K1_URST')
    a.label('K1_ENG'); a.reset()
    a('s_setprio 3')
    a('s_lshl_b32 s49, s58, 18')
    a('s_lshl_b32 s50, s59, 16')
    a('s_add_u32 s49, s49, s50')
    a('v_lshl_add_u32 v1, v0, 10, s49')
    a('v_lshl_add_u32 v5, v0, 7, s49')
    a('v_min_u32 v2, 55, v0')
    a('v_mul_u32_u24 v3, 4682, v2')
    a('v_lshrrev_b32 v3, 16, v3')
    a('v_mul_u32_u24 v4, 14, v3')
    a('v_sub_u32 v4, v2, v4')
    a('v_mul_u32_u24 v3, 3584, v3')
    a('v_lshl_add_u32 v3, v4, 7, v3')
    a('s_lshr_b32 s51, s58, 1')
    a('s_lshl_b32 s49, s51, 2')
    a('s_add_u32 s49, s49, s59')
    a('s_mul_i32 s49, s49, %d' % (4 * 3584))
    a('s_and_b32 s50, s58, 1')
    a('s_mul_i32 s52, s50, 1792')
    a('s_add_u32 s49, s49, s52')
    a('v_add_u32 v3, s49, v3')
    a('v_lshrrev_b32 v6, 2, v0')
    a('v_lshlrev_b32 v6, 10, v6')
    a('v_and_b32 v7, 3, v0')
    a('v_lshl_add_u32 v6, v7, 7, v6')
    a('s_lshl_b32 s49, s59, 14')
    a('s_lshl_b32 s50, s50, 9')
    a('s_add_u32 s49, s49, s50')
    a('v_add_u32 v6, s49, v6')
    a('s_mul_i32 s51, s51, 7')
    a('s_waitcnt lgkmcnt(0)')
    srd(a, 32, 's4', 's5', 2048 * 1024)
    srd(a, 36, 's24', 's25', 512 * 3584)
    srd(a, 40, 's26', 's27', 512 * 3584)
    srd(a, 44, 's16', 's17', 2048 * 1024)
    srd(a, 12, 's28', 's29', 1792 * 1024)
    S.mark(4)
    if ENGG0: a('buffer_load_dword v16, v3, s[36:39], 0 offen')
    a('buffer_load_dword v16, v3, s[40:43], 0 offen')
    for c in range(1, 8):
        a('s_mov_b32 s49, %d' % (c * 64 * 3584))
        a('buffer_load_dword v16, v1, s[32:35], 0 offen offset:%d' % (c * 128))
        a('buffer_load_dword v16, v3, s[36:39], s49 offen')
        a('buffer_load_dword v16, v3, s[40:43], s49 offen')
    S.mark(2)
    a('s_setprio 0')
    a('s_getpc_b64 s[54:55]')
    a.label('K1_PC')
    a('s_add_u32 s54, s54, k3_kernel-K1_PC')
    a('s_addc_u32 s55, s55, 0')
    a('s_and_b32 s50, s59, 1')
    a('s_lshl_b32 s50, s50, 13')
    a('v_lshl_add_u32 v8, v0, 7, s50')
    a('v_min_u32 v8, K3_LAST-k3_kernel, v8')
    a('global_load_dword v16, v8, s[54:55]')
    if ENGWD:
        a('s_mov_b32 s52, %d' % ENGWD)
        a.label('K1_WD')
        a('s_lshl_b32 s49, s51, 16')
        a('buffer_load_dword v16, v6, s[12:15], s49 offen')
        a('s_add_u32 s51, s51, 1')
        a('s_cmp_eq_u32 s51, 28')
        a('s_cselect_b32 s51, 0, s51')
        a('s_sub_u32 s52, s52, 1')
        a('s_cmp_lg_u32 s52, 0')
        a('s_cbranch_scc1 K1_WD')
    S.mark(3)
    for i in range(8):
        a('s_mov_b32 s49, %d' % (i * 8192))
        a('buffer_load_dword v16, v5, s[44:47], s49 offen')
    S.mark(5)
    a('s_barrier')
    a('s_branch K1_URST')

    a.label('K1_LOADER'); a.reset()
    VX = 2; VW = 6
    a('v_lshrrev_b32 v10, 3, v0')
    a('v_lshlrev_b32 v10, 10, v10')
    a('v_and_b32 v11, 7, v0')
    a('v_lshrrev_b32 v12, 4, v0')
    a('v_xor_b32 v11, v11, v12')
    a('v_lshl_add_u32 v10, v11, 4, v10')
    a('s_lshl_b32 s49, s48, 15')
    a('v_add_u32 v%d, s49, v10' % VX)
    a('v_xor_b32 v10, 64, v%d' % VX)
    a('v_add_u32 v%d, 7168, v10' % (VX + 1))
    a('v_add_u32 v%d, 14336, v%d' % (VX + 2, VX))
    a('v_add_u32 v%d, 21504, v10' % (VX + 3))
    a('v_mul_u32_u24 v10, 3584, v12')
    a('v_and_b32 v11, 15, v0')
    a('v_lshlrev_b32 v13, 2, v12')
    a('v_xor_b32 v11, v11, v13')
    a('v_lshl_add_u32 v10, v11, 4, v10')
    a('s_mul_i32 s49, s48, 57344')
    a('v_add_u32 v%d, s49, v10' % VW)
    for i in range(1, 4):
        a('v_add_u32 v%d, %d, v%d' % (VW + i, 13312 * i, VW))
    a('v_lshlrev_b32 v10, 4, v0')
    a('s_lshl_b32 s50, s48, 12')
    a('s_lshl_b32 s52, s21, 17')
    a('s_lshl_b32 s51, s22, 8')
    a('s_sub_u32 s53, %d, s51' % (512 * 3584))
    a('s_waitcnt lgkmcnt(0)')
    srd_add(a, 32, 4, 's52', 131072)
    srd_add(a, 36, 24, 's51', 's53')
    srd_add(a, 40, 26, 's51', 's53')
    S.mark(10)
    vm = Counter(a, 'vmcnt', 63)
    QR = 16; GW = 32; LG = 36
    a('global_load_dwordx4 v[%d:%d], v10, s[30:31]' % (GW, GW + 3)); vm.issue('q')
    def group(gi):
        n, reg = divmod(gi, 3); slot = n % 3
        if reg == 0:
            a('s_mov_b32 s55, %d' % (n * 128)); a('s_mov_b32 s56, %d' % (n * 64 * 3584))
        V, Sr, so = [(VX, 32, 55), (VW, 36, 56), (VW, 40, 56)][reg]
        a('s_add_u32 m0, s50, %d' % (reg * 49152 + slot * 16384))
        for i in range(4):
            a('buffer_load_dwordx4 v%d, s[%d:%d], s%d offen offset:%d lds' % (V + i, Sr, Sr + 3, so, 1024 * i))
            vm.issue('c%d' % n)
    def tail_loads():
        a('s_and_b32 s51, s22, 7')
        a('s_lshl_b32 s51, s51, 14')
        a('s_add_u32 s51, s51, s50')
        for r in range(4):
            a('buffer_load_dwordx4 v[%d:%d], v10, s[32:35], s51 offen offset:%d' % (QR + 4 * r, QR + 4 * r + 3, 1024 * r)); vm.issue('q')
    gi = 0
    for n in range(8):
        lim = min(24, 3 * (n + 1) + LEAD // 4)
        while gi < lim:
            group(gi); gi += 1
            if gi == 24: tail_loads()
        vm.wait('c%d' % n)
        S.mark(2 + n)
        a('s_barrier')
    a('s_cmp_ge_u32 s22, 8')
    a('s_cbranch_scc1 K1_URST')
    vm.wait('q')
    for r in range(4):
        a('v_dot2_f32_bf16 v%d, v%d, v%d, 0' % (LG + r, QR + 4 * r, GW))
    for i in range(1, 4):
        for r in range(4):
            a('v_dot2_f32_bf16 v%d, v%d, v%d, v%d' % (LG + r, QR + 4 * r + i, GW + i, LG + r))
    for m in ('quad_perm:[1,0,3,2] row_mask:0xf', 'quad_perm:[2,3,0,1] row_mask:0xf', 'row_half_mirror row_mask:0xf', 'row_mirror row_mask:0xf',
              'row_bcast:15 row_mask:0xa', 'row_bcast:31 row_mask:0xc'):
        for r in range(4):
            a('v_add_f32_dpp v%d, v%d, v%d %s bank_mask:0xf' % (LG + r, LG + r, LG + r, m))
    for r in range(4): a('v_mul_f32 v%d, 0xbfb8aa3b, v%d' % (LG + r, LG + r))
    for r in range(4): a('v_exp_f32 v%d, v%d' % (LG + r, LG + r))
    for r in range(4): a('v_add_f32 v%d, 1.0, v%d' % (LG + r, LG + r))
    for r in range(4): a('v_rcp_f32 v%d, v%d' % (LG + r, LG + r))
    a('s_lshl_b32 s51, s21, 9')
    a('s_lshl_b32 s53, s22, 6')
    a('s_add_u32 s51, s51, s53')
    a('s_lshl_b32 s53, s48, 4')
    a('s_add_u32 s51, s51, s53')
    a('s_add_u32 s51, s51, %d' % GL_OFF)
    a('v_mov_b32 v10, s51')
    a('s_mov_b32 exec_lo, 0')
    a('s_mov_b32 exec_hi, 0x80000000')
    a('global_store_dwordx4 v10, v[%d:%d], s[18:19]' % (LG, LG + 3))
    a('s_mov_b64 exec, -1')
    a.label('K1_URST'); a.reset()
    a('s_lshl_b32 s51, s48, 11')
    a('s_add_u32 s51, s51, %d' % KVT)
    a('v_lshl_add_u32 v40, v0, 4, s51')
    a('ds_read_b128 v[44:47], v40')
    a('ds_read_b128 v[48:51], v40 offset:1024')
    a('s_lshl_b32 s51, s58, 18')
    a('s_lshl_b32 s53, s48, 16')
    a('s_add_u32 s51, s51, s53')
    a('s_lshl_b32 s53, s59, 7')
    a('s_sub_u32 s51, s51, s53')
    a('s_add_u32 s51, s51, %d' % (UR_OFF + 248 * 16))
    a('v_and_b32 v41, 7, v0')
    a('v_lshrrev_b32 v42, 4, v0')
    a('v_xor_b32 v41, v41, v42')
    a('v_xor_b32 v41, 7, v41')
    a('v_lshlrev_b32 v41, 4, v41')
    a('v_lshrrev_b32 v42, 3, v0')
    a('v_lshl_add_u32 v41, v42, 12, v41')
    a('v_add_u32 v41, s51, v41')
    a('v_xor_b32 v42, 64, v41')
    a('v_add_u32 v42, 32768, v42')
    a('s_waitcnt lgkmcnt(0)')
    a('global_store_dwordx4 v41, v[44:47], s[18:19] sc1')
    a('global_store_dwordx4 v42, v[48:51], s[18:19] sc1')
    S.mark(12)
    S.flush(160)
    a('s_endpgm')

    a.label('K1_COMPUTE'); a.reset()
    XA = 176; WA = 180; VST = 184
    KR = 40; VR = 51; SK = 60; KF = 64; WF = 86; VF = 94; KS = 110; OUT = 16
    a('s_lshl_b32 s51, s59, 16')
    a('s_lshl_b32 s53, s20, 14')
    a('s_add_u32 s51, s51, s53')
    a('s_lshl_b32 s53, s58, 7')
    a('s_add_u32 s51, s51, s53')
    a('v_lshrrev_b32 v10, 5, v0')
    a('v_and_b32 v11, 31, v0')
    a('v_lshlrev_b32 v12, 13, v10')
    a('v_lshl_add_u32 v12, v11, 2, v12')
    a('v_add_u32 v12, s51, v12')
    a('v_subrev_u32 v13, 3072, v12')
    a('v_add_u32 v12, 4096, v12')
    a('s_lshl_b32 s53, s58, 9')
    a('v_lshl_add_u32 v14, v11, 4, s53')
    a('s_waitcnt lgkmcnt(0)')
    srd(a, 32, 's6', 's7', 2048 * 1024)
    a('global_load_dwordx4 v[%d:%d], v14, s[10:11]' % (SK, SK + 3))
    for i in range(3):
        a('buffer_load_dword v%d, v13, s[32:35], 0 offen offset:%d' % (KR + i, 1024 * i))
    for i in range(8):
        a('global_load_dword v%d, v12, s[6:7] offset:%d' % (KR + 3 + i, 1024 * i - 4096))
    for i in range(8):
        a('global_load_dword v%d, v12, s[8:9] offset:%d' % (VR + i, 1024 * i - 4096))
    a('s_lshl_b32 s51, s2, 13')
    a('s_lshl_b32 s53, s20, 11')
    a('s_add_u32 s51, s51, s53')
    a('s_add_u32 s51, s51, %d' % ZT_OFF)
    a('v_lshl_add_u32 v188, v0, 4, s51')
    for i in range(4): a('v_mov_b32 v%d, -1' % (192 + i))
    a('global_store_dwordx4 v188, v[192:195], s[18:19] sc1')
    a('global_store_dwordx4 v188, v[192:195], s[18:19] offset:1024 sc1')
    a('s_lshl_b32 s51, s20, 1')
    a('v_add_u32 v10, s51, v10')
    a('v_and_b32 v15, 7, v0')
    a('v_xor_b32 v10, v10, v15')
    a('v_lshlrev_b32 v10, 4, v10')
    a('v_lshl_add_u32 v10, v11, 8, v10')
    a('v_add_u32 v24, %d, v10' % KVT)
    a('s_setprio 1')
    a('s_and_b32 s48, s20, 1')
    a('s_lshr_b32 s49, s20, 1')
    a('v_and_b32 v1, 31, v0')
    a('v_lshlrev_b32 v1, 7, v1')
    a('s_lshl_b32 s50, s48, 13')
    a('v_add_u32 v1, s50, v1')
    a('v_lshrrev_b32 v2, 5, v0')
    a('v_bfe_u32 v3, v0, 1, 3')
    a('v_xor_b32 v2, v2, v3')
    a('v_lshl_add_u32 v%d, v2, 4, v1' % XA)
    for ks in range(1, 4):
        a('v_xor_b32 v%d, %d, v%d' % (XA + ks, 32 * ks, XA))
    a('v_bfe_u32 v1, v0, 2, 2')
    a('v_lshrrev_b32 v2, 5, v0')
    a('v_lshl_add_u32 v2, v2, 3, v1')
    a('v_lshlrev_b32 v2, 8, v2')
    a('s_lshl_b32 s50, s49, 1')
    a('v_xor_b32 v1, s50, v1')
    a('v_lshl_add_u32 v2, v1, 6, v2')
    a('v_bfe_u32 v1, v0, 4, 1')
    a('v_lshl_add_u32 v2, v1, 5, v2')
    a('v_and_b32 v1, 3, v0')
    a('v_lshl_add_u32 v2, v1, 3, v2')
    a('v_add_u32 v%d, 49152, v2' % (WA + 0))
    a('v_add_u32 v%d, 98304, v2' % (WA + 2))
    a('v_xor_b32 v%d, 64, v%d' % (WA + 1, WA + 0))
    a('v_xor_b32 v%d, 64, v%d' % (WA + 3, WA + 2))
    a('v_lshlrev_b32 v%d, 4, v0' % VST)
    a('s_lshl_b32 s50, s21, 2')
    a('s_lshl_b32 s51, s48, 1')
    a('s_add_u32 s50, s50, s51')
    a('s_mul_i32 s50, s50, 112')
    a('s_lshl_b32 s51, s22, 3')
    a('s_add_u32 s50, s50, s51')
    a('s_lshl_b32 s51, s49, 2')
    a('s_add_u32 s50, s50, s51')
    a('s_lshl_b32 s52, s50, 10')
    a('s_add_u32 s53, s52, %d' % (112 * 1024))
    srd_add(a, 44, 18, H_OFF, 64 * 112 * 1024)
    a('s_waitcnt vmcnt(10)')
    for j in range(4):
        for c in range(2):
            srcr = SK + 2 * c + (j >> 1)
            if j & 1: a('v_and_b32 v%d, 0xffff0000, v%d' % (WF + 2 * j + c, srcr))
            else: a('v_lshlrev_b32 v%d, 16, v%d' % (WF + 2 * j + c, srcr))
    for i in range(11):
        a('v_lshlrev_b32 v%d, 16, v%d' % (KF + 2 * i, KR + i))
        a('v_and_b32 v%d, 0xffff0000, v%d' % (KF + 2 * i + 1, KR + i))
    for j in (3, 2, 1, 0):
        for r in range(8):
            k = KF + 2 * (r + 3 - j); d = KS + 2 * r; w = WF + 2 * j
            if j == 3: a('v_pk_mul_f32 v[%d:%d], v[%d:%d], v[%d:%d]' % (d, d + 1, k, k + 1, w, w + 1))
            else: a('v_pk_fma_f32 v[%d:%d], v[%d:%d], v[%d:%d], v[%d:%d]' % (d, d + 1, k, k + 1, w, w + 1, d, d + 1))
    a('s_waitcnt vmcnt(2)')
    for i in range(8):
        a('v_lshlrev_b32 v%d, 16, v%d' % (VF + 2 * i, VR + i))
        a('v_and_b32 v%d, 0xffff0000, v%d' % (VF + 2 * i + 1, VR + i))
    for r in range(8):
        d = KS + 2 * r; v = VF + 2 * r
        a('v_pk_mul_f32 v[%d:%d], v[%d:%d], v[%d:%d]' % (d, d + 1, d, d + 1, v, v + 1))
    for c in range(2):
        for j in range(4):
            a('v_cvt_pk_bf16_f32 v%d, v%d, v%d' % (OUT + 4 * c + j, KS + 2 * (7 - 2 * j) + c, KS + 2 * (6 - 2 * j) + c))
        a('ds_write_b128 v24, v[%d:%d] offset:%d' % (OUT + 4 * c, OUT + 4 * c + 3, 128 * c))
    a('s_waitcnt lgkmcnt(0)')
    S.mark(12)
    a('s_barrier')
    a('s_cmp_lt_u32 s59, 4')
    a('s_cbranch_scc1 K1_CEND')

    lg = Counter(a, 'lgkmcnt', 15)
    def acc(t, fb, gu): return ((t * 2 + fb) * 2 + gu) * 16
    def fr(st, name): return 128 + 24 * st + {'x0': 0, 'x1': 4, 'g0': 8, 'g1': 12, 'u0': 16, 'u1': 20}[name]
    def reads(step):
        c, ks = divmod(step, 4); st = step & 1; so = (c % 3) * 16384
        out = []
        def x(t):
            r = fr(st, 'x%d' % t)
            out.append(('x%d_%d' % (t, step), 'ds_read_b128 v[%d:%d], v%d offset:%d' % (r, r + 3, XA + ks, so + t * 4096)))
        def w(gu, fb):
            nm = 'gu'[gu] + str(fb); r = fr(st, nm)
            for t2 in range(2):
                out.append(('%s_%d' % (nm, step), 'ds_read_b64_tr_b16 v[%d:%d], v%d offset:%d' % (r + 2 * t2, r + 2 * t2 + 1, WA + 2 * gu + fb, so + (16 * ks + 4 * t2) * 256)))
        x(0); w(0, 0); x(1); w(1, 0); w(0, 1); w(1, 1)
        return out
    S.mark(2)
    for tag, t in reads(0):
        a(t); lg.issue(tag)
    order = [(0, 0, 0), (1, 0, 0), (0, 0, 1), (1, 0, 1), (0, 1, 0), (1, 1, 0), (0, 1, 1), (1, 1, 1)]
    for step in range(32):
        c, ks = divmod(step, 4); st = step & 1
        nxt = reads(step + 1) if step < 31 else []
        boundary = (ks == 3 and step < 31)
        if boundary:
            lg.wait_all()
        for mi, (t, fb, gu) in enumerate(order):
            nm = 'gu'[gu] + str(fb)
            lg.wait(['x%d_%d' % (t, step), '%s_%d' % (nm, step)])
            d = acc(t, fb, gu); A = fr(st, nm); B = fr(st, 'x%d' % t)
            C = '0' if step == 0 else 'v[%d:%d]' % (d, d + 15)
            a('v_mfma_f32_32x32x16_bf16 v[%d:%d], v[%d:%d], v[%d:%d], %s' % (d, d + 15, A, A + 3, B, B + 3, C))
            if boundary and mi == 0:
                continue
            if boundary and mi == 1:
                a('s_barrier')
                S.mark(3 + c)
            for _ in range(2):
                if nxt:
                    tag, tx = nxt.pop(0); a(tx); lg.issue(tag)
        assert not nxt
    S.mark(10)
    for fb in range(2):
        for t in range(2):
            g = acc(t, fb, 0); u = acc(t, fb, 1)
            for r in range(0, 16, 2):
                a('v_pk_mul_f32 v[%d:%d], v[%d:%d], v[%d:%d]' % (g + r, g + r + 1, g + r, g + r + 1, u + r, u + r + 1))
            o = 128 + (t * 2 + fb) * 8
            for r in range(8):
                a('v_cvt_pk_bf16_f32 v%d, v%d, v%d' % (o + r, g + 2 * r, g + 2 * r + 1))
            for e in range(2):
                a('buffer_store_dwordx4 v[%d:%d], v%d, s[44:47], s%d offen offset:%d%s' % (o + 4 * e, o + 4 * e + 3, VST, 52 + t, (2 * fb + e) * 1024, ' sc1' if HSC1 else ''))
    S.mark(11)
    a.label('K1_CEND')
    S.flush(160)
    a.label('K1_END')
    a('s_endpgm')

PU = 1088; PS = 16 * PU
CS = 4160; URL = 4 * CS; CHS = URL + 4608
CONV = 5 * PS; EXCH = CONV + 2 * CHS; OMG = EXCH + 16384; FLG = OMG + 256; K3_LDS = FLG + 64
def gen_k3(a):
    kstart(a, 'k3_kernel')
    a('s_cmp_ge_u32 s2, 256')
    a('s_cbranch_scc1 K3_END')
    S = Stamps(a, 2); S.start()
    a('s_load_dwordx2 s[4:5], s[0:1], 0')
    a('s_load_dwordx2 s[6:7], s[0:1], 72')
    a('s_load_dwordx2 s[16:17], s[0:1], 88')
    a('s_load_dwordx2 s[18:19], s[0:1], 104')
    a('s_load_dwordx4 s[36:39], s[0:1], 32')
    a('v_lshrrev_b32 v1, 6, v0')
    a('v_and_b32 v0, 63, v0')
    a('v_readfirstlane_b32 s20, v1')
    a('v_mov_b32 v2, %d' % FLG)
    a('v_lshl_add_u32 v2, v1, 2, v2')
    a('v_mov_b32 v3, 0')
    a('ds_write_b32 v2, v3')
    a('s_and_b32 s44, s2, 7')
    a('s_lshr_b32 s45, s2, 3')
    a('s_lshr_b32 s21, s44, 1')
    a('s_lshl_b32 s21, s21, 3')
    a('s_and_b32 s46, s45, 7')
    a('s_add_u32 s21, s21, s46')
    a('s_and_b32 s22, s44, 1')
    a('s_lshl_b32 s22, s22, 2')
    a('s_lshr_b32 s47, s45, 3')
    a('s_add_u32 s22, s22, s47')
    a('s_cmp_ge_u32 s20, 4')
    a('s_cbranch_scc1 K3_CONV')
    a('s_setprio 1')
    a('s_mul_i32 s27, s20, %d' % (28 * 1024))
    a('s_lshl_b32 s26, s27, 4')
    a('s_mul_i32 s28, s20, %d' % PS)
    VH = 2; VWD = 4; VTR = 6
    a('v_lshlrev_b32 v%d, 4, v0' % VH)
    a('v_add_u32 v%d, %d, v%d' % (VH + 1, 112 * 1024, VH))
    a('v_lshrrev_b32 v8, 3, v0')
    a('v_lshlrev_b32 v8, 10, v8')
    a('v_bfe_u32 v9, v0, 4, 1')
    a('v_lshlrev_b32 v10, 2, v9')
    a('v_and_b32 v11, 7, v0')
    a('v_xor_b32 v10, v10, v11')
    a('v_lshl_add_u32 v%d, v10, 4, v8' % VWD)
    a('v_add_u32 v%d, 7168, v%d' % (VWD + 1, VWD))
    a('v_bfe_u32 v8, v0, 2, 2')
    a('v_lshrrev_b32 v10, 5, v0')
    a('v_lshl_add_u32 v10, v10, 2, v8')
    a('v_lshlrev_b32 v10, 7, v10')
    a('v_lshrrev_b32 v8, 1, v8')
    a('v_lshl_add_u32 v10, v8, 6, v10')
    a('v_lshl_add_u32 v10, v9, 5, v10')
    a('v_and_b32 v8, 3, v0')
    a('v_lshl_add_u32 v10, v8, 3, v10')
    a('v_add_u32 v%d, s28, v10' % VTR)
    a('v_xor_b32 v10, 64, v10')
    a('v_add_u32 v%d, s28, v10' % (VTR + 1))
    a('s_mul_i32 s29, s21, %d' % (2 * 112 * 1024))
    a('s_add_u32 s29, s29, %d' % H_OFF)
    a('s_lshl_b32 s31, s22, 7')
    a('s_sub_u32 s30, %d, s31' % (1792 * 1024))
    a('s_waitcnt lgkmcnt(0)')
    a('s_barrier')
    S.mark(11)
    srd_add(a, 8, 18, 's29', 2 * 112 * 1024)
    srd_add(a, 12, 6, 's31', 's30')
    ACC = 16; HB = 80; WB = 144
    vm = Counter(a, 'vmcnt', 63); lg = Counter(a, 'lgkmcnt', 15)
    def issue(i):
        sl = i % NS
        a('s_add_u32 m0, s28, %d' % (sl * 2048))
        for t in range(2):
            h = HB + 8 * sl + 4 * t
            a('buffer_load_dwordx4 v[%d:%d], v%d, s[8:11], s27 offen' % (h, h + 3, VH + t)); vm.issue('s%d' % i)
        for t in range(2):
            a('buffer_load_dwordx4 v%d, s[12:15], s26 offen offset:%d lds' % (VWD + t, 1024 * t)); vm.issue('s%d' % i)
        a('s_add_u32 s27, s27, 1024')
        a('s_add_u32 s26, s26, 16384')
    def trreads(i):
        sl = i % NS; st = i & 1
        for db in range(2):
            for t2 in range(2):
                w = WB + 8 * st + 4 * db + 2 * t2
                a('ds_read_b64_tr_b16 v[%d:%d], v%d offset:%d' % (w, w + 1, VTR + db, sl * 2048 + t2 * 1024)); lg.issue('w%d' % i)
    for i in range(NS): issue(i)
    S.mark(2)
    vm.wait('s0'); S.mark(3); trreads(0)
    for i in range(28):
        sl = i % NS; st = i & 1
        if i in (7, 14, 21): S.mark(3 + i // 7)
        if i + 1 < 28:
            vm.wait('s%d' % (i + 1)); trreads(i + 1)
        lg.wait('w%d' % i)
        for t in range(2):
            for db in range(2):
                d = ACC + 16 * (2 * t + db); w = WB + 8 * st + 4 * db; h = HB + 8 * sl + 4 * t
                C = '0' if i == 0 else 'v[%d:%d]' % (d, d + 15)
                a('v_mfma_f32_32x32x16_bf16 v[%d:%d], v[%d:%d], v[%d:%d], %s' % (d, d + 15, w, w + 3, h, h + 3, C))
        if i + NS < 28: issue(i + NS)
    S.mark(7)
    a('v_lshl_add_u32 v8, v0, 4, s28')
    for u in range(16):
        a('ds_write_b128 v8, v[%d:%d] offset:%d' % (ACC + 4 * u, ACC + 4 * u + 3, u * PU))
    a.label('K3_FINAL'); a.reset()
    a('s_nop 1')
    a('s_lshr_b32 s29, s20, 2')
    a('s_mul_i32 s29, s29, %d' % (8 * PU))
    a('s_and_b32 s30, s20, 3')
    a('s_lshl_b32 s30, s30, 7')
    a('s_add_u32 s29, s29, s30')
    a('v_and_b32 v2, 7, v0')
    a('v_mul_u32_u24 v3, %d, v2' % PU)
    a('v_lshrrev_b32 v4, 3, v0')
    a('v_lshl_add_u32 v3, v4, 4, v3')
    a('v_add_u32 v3, s29, v3')
    a('v_add_u32 v7, %d, v3' % (3 * PS))
    a('s_lshl_b32 s29, s20, 5')
    a('s_add_u32 s29, s29, %d' % OMG)
    a('v_lshl_add_u32 v5, v4, 2, s29')
    a('s_lshl_b32 s29, s21, 16')
    a('s_lshl_b32 s30, s20, 13')
    a('s_add_u32 s29, s29, s30')
    a('s_lshl_b32 s30, s22, 7')
    a('s_add_u32 s29, s29, s30')
    a('v_lshlrev_b32 v6, 10, v4')
    a('v_lshl_add_u32 v6, v2, 4, v6')
    a('v_add_u32 v6, s29, v6')
    a('s_waitcnt lgkmcnt(0)')
    S.mark(8)
    a('s_barrier')
    S.mark(9)
    if PROF: a('s_waitcnt lgkmcnt(0)')
    for p in range(5):
        for hf in range(2):
            r = 16 + 8 * p + 4 * hf
            if p < 3: a('ds_read_b128 v[%d:%d], v3 offset:%d' % (r, r + 3, p * PS + hf * 512))
            else: a('ds_read_b128 v[%d:%d], v7 offset:%d' % (r, r + 3, (p - 3) * PS + hf * 512))
    a('ds_read_b32 v8, v5')
    a('s_waitcnt lgkmcnt(7)')
    for r in range(0, 8, 2): a('v_pk_add_f32 v[%d:%d], v[%d:%d], v[%d:%d]' % (16 + r, 17 + r, 16 + r, 17 + r, 24 + r, 25 + r))
    a('s_waitcnt lgkmcnt(3)')
    for r in range(0, 8, 2): a('v_pk_add_f32 v[%d:%d], v[%d:%d], v[%d:%d]' % (32 + r, 33 + r, 32 + r, 33 + r, 40 + r, 41 + r))
    for r in range(0, 8, 2): a('v_pk_add_f32 v[%d:%d], v[%d:%d], v[%d:%d]' % (16 + r, 17 + r, 16 + r, 17 + r, 32 + r, 33 + r))
    a('s_waitcnt lgkmcnt(0)')
    for r in range(8): a('v_fmac_f32 v%d, v8, v%d' % (48 + r, 16 + r))
    for r in range(4): a('v_cvt_pk_bf16_f32 v%d, v%d, v%d' % (56 + r, 48 + 2 * r, 49 + 2 * r))
    a('global_store_dwordx4 v6, v[56:59], s[16:17]')
    S.mark(10)
    S.flush(100)
    a.label('K3_END')
    a('s_endpgm')

    a.label('K3_CONV'); a.reset()
    a('s_setprio 3')
    a('s_sub_u32 s48, s20, 4')
    a('s_lshl_b32 s49, s44, 5')
    a('s_add_u32 s49, s49, s45')
    a('s_lshr_b32 s50, s48, 1')
    a('s_and_b32 s23, s48, 1')
    a('s_lshl_b32 s24, s49, 1')
    a('s_add_u32 s24, s24, s50')
    a('s_mul_i32 s25, s50, %d' % CHS)
    a('s_add_u32 s25, s25, %d' % CONV)
    a('s_lshl_b32 s26, s23, 11')
    a('v_lshl_add_u32 v2, v0, 4, s26')
    a('v_subrev_u32 v3, 8, v2')
    a('v_add_u32 v4, 1016, v2')
    a('s_lshl_b32 s28, s49, 2')
    a('s_lshl_b32 s27, s24, 12')
    a('s_add_u32 s31, s27, %d' % UR_OFF)
    a('s_waitcnt lgkmcnt(0)')
    a('s_barrier')
    S.mark(11)
    a('s_load_dword s29, s[38:39], s28')
    srd_add(a, 8, 36, 's27', 4096)
    srd_add(a, 12, 18, 's31', 4096)
    R = [16, 24]
    a('buffer_load_dwordx2 v[%d:%d], v3, s[8:11], 0 offen' % (R[0], R[0] + 1))
    a('buffer_load_dwordx4 v[%d:%d], v2, s[8:11], 0 offen' % (R[0] + 2, R[0] + 5))
    a('buffer_load_dwordx2 v[%d:%d], v4, s[8:11], 0 offen' % (R[1], R[1] + 1))
    a('buffer_load_dwordx4 v[%d:%d], v2, s[8:11], 0 offen offset:1024' % (R[1] + 2, R[1] + 5))
    a('s_add_u32 s30, s25, s26')
    a('s_add_u32 m0, s30, %d' % URL)
    a('buffer_load_dwordx4 v2, s[12:15], 0 offen lds')
    a('buffer_load_dwordx4 v2, s[12:15], 0 offen offset:1024 lds')
    a('v_lshrrev_b32 v7, 1, v0')
    a('v_mul_u32_u24 v7, %d, v7' % CS)
    a('v_and_b32 v8, 1, v0')
    a('v_lshl_add_u32 v7, v8, 4, v7')
    a('v_subrev_u32 v8, 8, v0')
    a('v_and_b32 v8, 31, v8')
    a('v_lshlrev_b32 v8, 4, v8')
    a('v_add_u32 v8, %d, v8' % (URL + 4096))
    a('v_cmp_gt_u32 vcc, 8, v0')
    a('v_cndmask_b32 v7, v8, v7, vcc')
    a('v_add_u32 v7, s25, v7')
    for i in range(4): a('v_mov_b32 v%d, 0' % (32 + i))
    a('ds_write_b128 v7, v[32:35]')
    a('s_add_u32 s31, s25, 32')
    a('v_add_u32 v9, s31, v2')
    a('v_not_b32 v10, v0')
    a('v_and_b32 v10, 3, v10')
    a('v_mul_u32_u24 v10, %d, v10' % CS)
    a('v_lshrrev_b32 v11, 4, v0')
    a('v_lshl_add_u32 v10, v11, 4, v10')
    a('v_bfe_u32 v12, v0, 2, 2')
    a('v_lshl_add_u32 v10, v12, 3, v10')
    a('s_lshl_b32 s31, s23, 8')
    a('s_add_u32 s31, s31, s25')
    a('s_add_u32 s32, s31, 8')
    a('v_add_u32 v10, s32, v10')
    a('v_and_b32 v12, 15, v0')
    a('v_lshlrev_b32 v12, 5, v12')
    a('v_lshlrev_b32 v13, 4, v11')
    a('v_sub_u32 v13, v13, v12')
    a('s_add_u32 s32, s31, %d' % (URL + 480))
    a('v_add_u32 v13, s32, v13')
    a('s_lshl_b32 s31, s20, 2')
    a('s_add_u32 s31, s31, %d' % FLG)
    a('v_mov_b32 v14, s31')
    a('v_xor_b32 v15, 4, v14')
    for i in range(2):
        r = R[i]; o = 36 + 12 * i
        a('s_waitcnt vmcnt(%d)' % (4 - 2 * i))
        for j in range(4):
            a('v_alignbit_b32 v%d, v%d, v%d, 16' % (o + j, r + 2 + j, r + 1 + j))
        for j in range(4):
            a('v_mov_b32 v%d, v%d' % (o + 4 + j, r + 1 + j))
        for j in range(4):
            a('v_alignbit_b32 v%d, v%d, v%d, 16' % (o + 8 + j, r + 1 + j, r + j))
        a('ds_write_b128 v9, v[%d:%d] offset:%d' % (r + 2, r + 5, 1024 * i))
        for sg in range(3):
            a('ds_write_b128 v9, v[%d:%d] offset:%d' % (o + 4 * sg, o + 4 * sg + 3, 1024 * i + (sg + 1) * CS))
    def pair_sync(k):
        a('v_mov_b32 v1, %d' % k)
        a('s_waitcnt vmcnt(0) lgkmcnt(0)')
        a('ds_write_b32 v14, v1')
        a.label('K3_SPIN%d' % k)
        a('ds_read_b32 v1, v15')
        a('s_waitcnt lgkmcnt(0)')
        a('v_readfirstlane_b32 s31, v1')
        a('s_cmp_lt_u32 s31, %d' % k)
        a('s_cbranch_scc1 K3_SPIN%d' % k)
    S.mark(2)
    pair_sync(1)
    a('s_setprio 0')
    S.mark(3)
    Y = 48; TB = [80, 144]; FB = [112, 176]
    lg = Counter(a, 'lgkmcnt', 15)
    def reads(rp):
        st = rp & 1; out = []
        for i in range(8):
            t = TB[st] + 4 * i; f = FB[st] + 4 * i
            out.append(('T%d_%d' % (i, rp), 'ds_read_b64 v[%d:%d], v10 offset:%d' % (t, t + 1, 512 * i + 64 * rp)))
            out.append(('T%d_%d' % (i, rp), 'ds_read_b64 v[%d:%d], v10 offset:%d' % (t + 2, t + 3, 512 * i + 64 * rp + 8)))
            out.append(('F%d_%d' % (i, rp), 'ds_read_b128 v[%d:%d], v13 offset:%d' % (f, f + 3, 3584 - 512 * i + 64 * rp)))
        return out
    for tag, t in reads(0):
        a(t); lg.issue(tag)
    pairs = sorted([(c, nu) for c in range(8) for nu in range(8) if c + nu <= 7], key=lambda p: (max(p), p))
    for rp in range(4):
        st = rp & 1
        nxt = reads(rp + 1) if rp < 3 else []
        seen = set()
        for (c, nu) in pairs:
            lg.wait(['T%d_%d' % (c, rp), 'F%d_%d' % (nu, rp)])
            A = c + nu; d = Y + 4 * A
            C = '0' if (rp == 0 and A not in seen) else 'v[%d:%d]' % (d, d + 3)
            seen.add(A)
            t = TB[st] + 4 * c; f = FB[st] + 4 * nu
            a('v_mfma_f32_16x16x32_bf16 v[%d:%d], v[%d:%d], v[%d:%d], %s' % (d, d + 3, t, t + 3, f, f + 3, C))
            if nxt and not (rp == 0 and len(lg.q) > 8):
                tag, tx = nxt.pop(0); a(tx); lg.issue(tag)
        while nxt:
            tag, tx = nxt.pop(0); a(tx); lg.issue(tag)
    S.mark(4)
    a('s_setprio 3')
    a('s_lshl_b32 s31, s48, 12')
    a('s_add_u32 s31, s31, %d' % EXCH)
    a('v_lshl_add_u32 v2, v0, 4, s31')
    a('s_xor_b32 s32, s48, 1')
    a('s_lshl_b32 s32, s32, 12')
    a('s_add_u32 s32, s32, %d' % EXCH)
    a('v_lshl_add_u32 v3, v0, 4, s32')
    a('s_lshl_b32 s32, s23, 11')
    a('s_sub_u32 s33, s25, s32')
    a('s_add_u32 s33, s33, %d' % (URL + 4088 - 1536))
    a('v_lshl_add_u32 v4, v11, 3, v12')
    a('v_sub_u32 v5, s33, v4')
    a('s_add_u32 s31, s27, s32')
    a('s_add_u32 s31, s31, %d' % ZT_OFF)
    a('v_lshl_add_u32 v6, v0, 4, s31')
    a('s_mul_i32 s28, s23, %d' % (2 * CS))
    a('s_add_u32 s28, s28, s25')
    a('v_add_u32 v16, s28, v4')
    a('v_lshl_add_u32 v17, v0, 4, s28')
    a('s_lshl_b32 s33, s29, 16')
    a('s_and_b32 s29, s29, 0xffff0000')
    a('s_cmp_eq_u32 s50, 0')
    a('s_cselect_b32 s29, s33, s29')
    a('s_nop 4')
    a('s_cmp_eq_u32 s23, 0')
    a('s_cbranch_scc1 K3_SEND_HI')
    for i in range(4):
        a('ds_write_b128 v2, v[%d:%d] offset:%d' % (Y + 4 * i, Y + 4 * i + 3, 1024 * i))
    a('s_waitcnt lgkmcnt(0)')
    for i in range(16):
        a('v_mov_b32 v%d, v%d' % (Y + i, Y + 16 + i))
    a('s_branch K3_SENT')
    a.label('K3_SEND_HI'); a.reset()
    for i in range(4):
        a('ds_write_b128 v2, v[%d:%d] offset:%d' % (Y + 16 + 4 * i, Y + 16 + 4 * i + 3, 1024 * i))
    a.label('K3_SENT')
    pair_sync(2)
    S.mark(5)
    if PROF: a('s_waitcnt lgkmcnt(0)')
    for i in range(4):
        a('ds_read_b128 v[%d:%d], v3 offset:%d' % (96 + 4 * i, 99 + 4 * i, 1024 * i))
        a('ds_read_b64 v[%d:%d], v5 offset:%d' % (112 + 2 * i, 113 + 2 * i, 1536 - 512 * i))
    for i in range(4):
        a('s_waitcnt lgkmcnt(%d)' % (6 - i))
        y = Y + 4 * i; y2 = 96 + 4 * i; kv = 112 + 2 * i
        a('v_and_b32 v120, 0xffff0000, v%d' % (kv + 1))
        a('v_lshlrev_b32 v121, 16, v%d' % (kv + 1))
        a('v_and_b32 v122, 0xffff0000, v%d' % kv)
        a('v_lshlrev_b32 v123, 16, v%d' % kv)
        for r in range(4):
            a('v_add_f32 v%d, v%d, v%d' % (y + r, y + r, y2 + r))
        for r in range(4):
            a('v_fmac_f32 v%d, s29, v%d' % (y + r, 120 + r))
        a('v_cvt_pk_bf16_f32 v%d, v%d, v%d' % (124 + 2 * i, y, y + 1))
        a('v_cvt_pk_bf16_f32 v%d, v%d, v%d' % (125 + 2 * i, y + 2, y + 3))
        a('v_min_u32 v%d, -2, v%d' % (124 + 2 * i, 124 + 2 * i))
        a('v_min_u32 v%d, -2, v%d' % (125 + 2 * i, 125 + 2 * i))
        a('ds_write_b64 v16, v[%d:%d] offset:%d' % (124 + 2 * i, 125 + 2 * i, 4096 + 512 * i))
    a('s_waitcnt lgkmcnt(0)')
    a('ds_read_b128 v[96:99], v17 offset:4096')
    a('ds_read_b128 v[100:103], v17 offset:5120')
    a('s_waitcnt lgkmcnt(1)')
    a('global_store_dwordx4 v6, v[96:99], s[18:19] sc1')
    a('s_waitcnt lgkmcnt(0)')
    a('global_store_dwordx4 v6, v[100:103], s[18:19] offset:1024 sc1')
    a('s_lshl_b32 s26, s21, 1')
    a('s_add_u32 s26, s26, s50')
    a('s_lshl_b32 s27, s22, 1')
    a('s_add_u32 s27, s27, s23')
    a('v_lshrrev_b32 v2, 2, v0')
    a('v_and_b32 v3, 3, v0')
    a('v_lshlrev_b32 v3, 4, v3')
    a('v_lshl_add_u32 v4, v2, 10, v3')
    a('v_add_u32 v5, %d, v4' % (16384 - 1024))
    a('v_lshl_add_u32 v16, v2, 12, v3')
    a('v_add_u32 v17, 65536, v16')
    a('v_and_b32 v8, 31, v0')
    a('s_lshl_b32 s30, s26, 7')
    a('s_add_u32 s30, s30, %d' % GL_OFF)
    a('v_lshl_add_u32 v9, v8, 2, s30')
    a('s_lshl_b32 s30, s26, 15')
    a('s_lshl_b32 s31, s27, 6')
    a('s_add_u32 s30, s30, s31')
    srd_add(a, 8, 4, 's30', 32768)
    a('s_lshl_b32 s30, s27, 17')
    a('s_lshl_b32 s31, s26, 6')
    a('s_add_u32 s30, s30, s31')
    a('s_add_u32 s30, s30, %d' % ZT_OFF)
    srd_add(a, 12, 18, 's30', 131072)
    S.mark(6)
    a('global_load_dword v21, v9, s[18:19]')
    a('s_mov_b32 m0, s28')
    a('buffer_load_dwordx4 v4, s[8:11], 0 offen lds')
    a('buffer_load_dwordx4 v5, s[8:11], 0 offen offset:1024 lds')
    a('v_lshrrev_b32 v2, 5, v0')
    a('v_lshlrev_b32 v3, 6, v8')
    a('v_lshl_add_u32 v3, v2, 3, v3')
    a('v_add_u32 v3, s28, v3')
    a('v_bfe_u32 v4, v0, 2, 2')
    a('v_lshl_add_u32 v4, v2, 2, v4')
    a('v_lshlrev_b32 v4, 6, v4')
    a('v_bfe_u32 v5, v0, 4, 1')
    a('v_lshl_add_u32 v4, v5, 5, v4')
    a('v_and_b32 v5, 3, v0')
    a('v_lshl_add_u32 v4, v5, 3, v4')
    a('v_add_u32 v4, s28, v4')
    a('v_lshl_add_u32 v7, v0, 4, s28')
    a('s_waitcnt vmcnt(0)')
    a('v_sub_f32 v23, 1.0, v21')
    a('s_lshl_b32 s30, s50, 7')
    a('s_add_u32 s30, s30, %d' % OMG)
    a('v_lshl_add_u32 v5, v8, 2, s30')
    a('ds_write_b32 v5, v23')
    for j in range(4):
        a('ds_read_b64 v[%d:%d], v3 offset:%d' % (32 + 2 * j, 33 + 2 * j, 16 * j))
    a('s_mul_i32 s30, s48, %d' % (4 * PU))
    a('s_add_u32 s30, s30, %d' % (4 * PS))
    a('v_lshl_add_u32 v6, v0, 4, s30')
    a('s_waitcnt lgkmcnt(0)')
    for j in range(8):
        a('v_lshlrev_b32 v%d, 16, v%d' % (64 + 2 * j, 32 + j))
        a('v_and_b32 v%d, 0xffff0000, v%d' % (65 + 2 * j, 32 + j))
    for j in range(16):
        a('v_mul_f32 v%d, v21, v%d' % (64 + j, 64 + j))
    a('s_mov_b32 s30, 0')
    a.label('K3_POLL')
    a('buffer_load_dwordx4 v[24:27], v16, s[12:15], 0 offen sc1')
    a('buffer_load_dwordx4 v[28:31], v17, s[12:15], 0 offen sc1')
    a('s_add_u32 s30, s30, 1')
    a('s_waitcnt vmcnt(0)')
    a('v_max3_u32 v22, v24, v25, v26')
    a('v_max3_u32 v23, v27, v28, v29')
    a('v_max3_u32 v22, v22, v30, v31')
    a('v_max_u32 v22, v22, v23')
    a('v_cmp_eq_u32 vcc, -1, v22')
    a('s_cmp_eq_u64 vcc, 0')
    a('s_cbranch_scc1 K3_READY')
    a('s_sleep %d' % opt('backoff', 12))
    a('s_cmp_lt_u32 s30, 50000')
    a('s_cbranch_scc1 K3_POLL')
    a.label('K3_READY')
    S.mark(7)
    if PROF: a('s_mov_b32 s88, s30')
    a('ds_write_b128 v7, v[24:27] offset:2048')
    a('ds_write_b128 v7, v[28:31] offset:3072')
    a('s_waitcnt lgkmcnt(0)')
    for j in range(4):
        a('ds_read_b64_tr_b16 v[%d:%d], v4 offset:%d' % (40 + 2 * j, 41 + 2 * j, 2048 + 512 * j))
    for j in range(4):
        a('s_waitcnt lgkmcnt(%d)' % (3 if j == 0 else 3))
        for e in range(2):
            zz = 40 + 2 * j + e; o = 64 + 4 * j + 2 * e
            a('v_lshlrev_b32 v48, 16, v%d' % zz)
            a('v_and_b32 v49, 0xffff0000, v%d' % zz)
            a('v_mul_f32 v%d, v48, v%d' % (o, o))
            a('v_mul_f32 v%d, v49, v%d' % (o + 1, o + 1))
        a('ds_write_b128 v6, v[%d:%d] offset:%d' % (64 + 4 * j, 67 + 4 * j, j * PU))
    a('s_branch K3_FINAL')
    a.label('K3_LAST')
    a('s_endpgm')

def main():
    a = Asm()
    out = HEADER
    out += '; @launch kernel=k1_kernel grid=(256,1,1) block=(512,1,1) lds=%d\n' % K1_LDS
    out += '; @launch kernel=k3_kernel grid=(256,1,1) block=(512,1,1) lds=%d\n' % K3_LDS
    out += '.amdgcn_target "amdgcn-amd-amdhsa--gfx950"\n.text\n'
    gen_k1(a); gen_k3(a)
    out += a.text()
    out += '.section .rodata,"a"\n' + kdesc('k1_kernel', 200, 64) + kdesc('k3_kernel', 208, 64)
    open(outpath(), 'w').write(out)
    print('wrote', outpath(), 'nops inserted:', a.npad, 'K3 lds', K3_LDS)

main()
```

```python
from common import *

NH = opt('nh', 16); NHA = opt('nha', 8); PSTEP = opt('pstep', 50)
ENGQ = opt('engq', 3); ENGA = opt('enga', 2); ENGG0 = opt('engg0', 1)
PH1 = opt('ph1', 0)
PX_OFF = 0x1000000
KN = NAME + '_kernel'

SLOT = [49152, 0, 114688]
SP = 98304
CONV = 114688
PU = 1088; PS = 16 * PU
PART = 49152
CS = 4160; URL = 4 * CS; CHS = URL + 4608
TW = CONV + 2 * CHS
W_HA, W_HB, W_W0, W_Z, W_PAIR, W_W1, W_P, W_G2, W_R6, W_KV, W_X, W_R7 = 0, 4, 8, 12, 16, 32, 36, 40, 44, 48, 52, 56
OMG = TW + 256
KST = 114688; VSTG = KST + 9216; SKS = VSTG + 8192
LDS = 163840
SPINMAX = 200000
def wd_unit(k): return SP + 4096 * k if k < 4 else (SLOT[0] + 4096 * (k - 4) if k < 16 else 4096 * (k - 16))
def flag_off(kind): return FL_OFF + kind * 32768

def gen(a):
    kstart(a, KN)
    a('s_cmp_ge_u32 s2, 256')
    a('s_cbranch_scc1 L_END')
    S = Stamps(a, 0); S.start()
    def M(i, ph1=False):
        if bool(PH1) == ph1: S.mark(i)
    a('s_load_dwordx8 s[4:11], s[0:1], 0')
    a('s_load_dwordx8 s[24:31], s[0:1], 56')
    a('s_load_dwordx4 s[12:15], s[0:1], 32')
    a('s_load_dwordx4 s[60:63], s[0:1], 88')
    a('s_load_dwordx2 s[18:19], s[0:1], 104')
    a('s_lshr_b32 s22, s2, 3')
    a('s_getpc_b64 s[50:51]')
    a.label('L_PC0')
    a('s_lshl_b32 s48, s22, 10')
    a('v_lshl_add_u32 v2, v0, 7, s48')
    a('v_min_u32 v2, L_LAST-L_PC0, v2')
    a('v_cmp_gt_u32 vcc, 8, v0')
    a('s_and_saveexec_b64 s[52:53], vcc')
    a('s_cbranch_execz L_NOCT')
    a('global_load_dword v250, v2, s[50:51]')
    a.label('L_NOCT')
    a('s_mov_b64 exec, s[52:53]')
    a('v_lshrrev_b32 v1, 6, v0')
    a('v_and_b32 v0, 63, v0')
    a('v_readfirstlane_b32 s20, v1')
    a('s_and_b32 s21, s2, 7')
    a('s_lshr_b32 s16, s21, 1')
    a('s_lshl_b32 s16, s16, 2')
    a('s_and_b32 s48, s22, 3')
    a('s_add_u32 s16, s16, s48')
    a('s_and_b32 s3, s21, 1')
    a('s_mul_i32 s17, s3, 7')
    a('s_lshr_b32 s48, s22, 2')
    a('s_add_u32 s17, s17, s48')
    a('s_sub_u32 s17, s17, 1')
    a('s_lshl_b32 s59, s21, 5')
    a('s_add_u32 s59, s59, s22')
    a('s_and_b32 s23, s20, 3')
    a('s_cmp_lt_u32 s20, 4')
    a('s_cbranch_scc1 L_COMPUTE')
    a('s_cmp_lt_u32 s22, 4')
    a('s_cbranch_scc1 L_SPARE')

    uniq = [0]
    def lab(p):
        uniq[0] += 1; return '%s%d' % (p, uniq[0])

    def lds_spin(vaddr, off, val, vtmp, sleep=1):
        L = lab('L_SPIN'); D = lab('L_SPUN')
        a('s_mov_b32 s49, 0')
        a.label(L)
        a('ds_read_b32 v%d, v%d offset:%d' % (vtmp, vaddr, off))
        a('s_waitcnt lgkmcnt(0)')
        a('v_readfirstlane_b32 s48, v%d' % vtmp)
        a('s_cmp_ge_u32 s48, %d' % val)
        a('s_cbranch_scc1 %s' % D)
        if sleep: a('s_sleep %d' % sleep)
        a('s_add_u32 s49, s49, 1')
        a('s_cmp_lt_u32 s49, %d' % (SPINMAX * 16))
        a('s_cbranch_scc1 %s' % L)
        a.label(D); a.reset()

    def lds_add(vaddr, off, vone, rtn=None):
        a('s_mov_b64 exec, 1')
        if rtn is None: a('ds_add_u32 v%d, v%d offset:%d' % (vaddr, vone, off))
        else: a('ds_add_rtn_u32 v%d, v%d, v%d offset:%d' % (rtn, vaddr, vone, off))
        a('s_mov_b64 exec, -1')

    def flag_store(kind, vaddr, vf):
        a('s_lshl_b32 s48, s59, 7')
        a('s_add_u32 s48, s48, %d' % flag_off(kind))
        a('v_mov_b32 v%d, s48' % vaddr)
        a('v_mov_b32 v%d, s56' % vf)
        a('v_mov_b32 v%d, s57' % (vf + 1))
        a('s_mov_b64 exec, 1')
        a('global_store_dwordx2 v%d, v[%d:%d], s[18:19] sc1' % (vaddr, vf, vf + 1))
        a('s_mov_b64 exec, -1')

    def join_flag(vw, vone, word, last, kind, vt):
        lds_add(vw, word, vone, rtn=vt)
        a('s_waitcnt lgkmcnt(0)')
        a('v_readfirstlane_b32 s48, v%d' % vt)
        L = lab('L_NOF')
        a('s_cmp_lg_u32 s48, %d' % last)
        a('s_cbranch_scc1 %s' % L)
        flag_store(kind, vt + 2, vt)
        a.label(L)

    def flag_poll(vaddr, vd, sleep, loaded=False):
        L = lab('L_POLL'); C = lab('L_POLC'); D = lab('L_POLD')
        a('s_mov_b32 s49, 0')
        if loaded: a('s_branch %s' % C)
        a.label(L)
        a('global_load_dwordx2 v[%d:%d], v%d, s[18:19] sc1' % (vd, vd + 1, vaddr))
        a('s_waitcnt vmcnt(0)')
        a.label(C)
        a('v_cmp_ne_u64 vcc, s[56:57], v[%d:%d]' % (vd, vd + 1))
        a('s_cmp_eq_u64 vcc, 0')
        a('s_cbranch_scc1 %s' % D)
        a('s_sleep %d' % sleep)
        a('s_add_u32 s49, s49, 1')
        a('s_cmp_lt_u32 s49, %d' % SPINMAX)
        a('s_cbranch_scc1 %s' % L)
        a.label(D); a.reset()

    def sflag_loads(pairs, soff):
        for i, p in enumerate(pairs):
            a('s_load_dwordx2 s[%d:%d], s[18:19], %s offset:%d' % (p, p + 1, soff, 128 * i))
    def sflag_check(pairs, soff, vt, sleep):
        D = lab('L_SPD')
        a('s_waitcnt lgkmcnt(0)')
        a('s_xor_b64 s[50:51], s[%d:%d], s[56:57]' % (pairs[0], pairs[0] + 1))
        for p in pairs[1:]:
            a('s_xor_b64 s[%d:%d], s[%d:%d], s[56:57]' % (p, p + 1, p, p + 1))
            a('s_or_b64 s[50:51], s[50:51], s[%d:%d]' % (p, p + 1))
        a('s_cmp_eq_u64 s[50:51], 0')
        a('s_cbranch_scc1 %s' % D)
        a('v_and_b32 v%d, 7, v0' % (vt + 2))
        a('v_lshl_add_u32 v%d, v%d, 7, %s' % (vt + 2, vt + 2, soff))
        flag_poll(vt + 2, vt, sleep)
        a.label(D); a.reset()

    def tag_load(): a('s_load_dwordx2 s[56:57], s[62:63], 0')
    def tag_get(vt):
        L = lab('L_TAG'); D = lab('L_TAGD')
        a('s_waitcnt lgkmcnt(0)')
        a('s_cmp_lg_u32 s56, 0')
        a('s_cbranch_scc1 %s' % D)
        a('s_mov_b32 s49, 0')
        a('v_mov_b32 v%d, 0' % (vt + 2))
        a.label(L)
        a('s_sleep 8')
        a('global_load_dwordx2 v[%d:%d], v%d, s[62:63] sc1' % (vt, vt + 1, vt + 2))
        a('s_waitcnt vmcnt(0)')
        a('v_readfirstlane_b32 s56, v%d' % vt)
        a('v_readfirstlane_b32 s57, v%d' % (vt + 1))
        a('s_add_u32 s49, s49, 1')
        a('s_cmp_lt_u32 s49, %d' % SPINMAX)
        a('s_cselect_b32 s48, s56, 1')
        a('s_cmp_eq_u32 s48, 0')
        a('s_cbranch_scc1 %s' % L)
        a('s_nop 4')
        a.label(D); a.reset()

    def wd_addr(V):
        a('v_lshrrev_b32 v%d, 3, v0' % V)
        a('v_lshlrev_b32 v%d, 10, v%d' % (V, V))
        a('v_bfe_u32 v%d, v0, 4, 1' % (V + 1))
        a('v_lshlrev_b32 v%d, 2, v%d' % (V + 1, V + 1))
        a('v_and_b32 v%d, 7, v0' % (V + 2))
        a('v_xor_b32 v%d, v%d, v%d' % (V + 1, V + 1, V + 2))
        a('v_lshl_add_u32 v%d, v%d, 4, v%d' % (V, V + 1, V))
        a('v_add_u32 v%d, 15360, v%d' % (V + 1, V))
        a('v_add_u32 v%d, %d, v%d' % (V + 2, 448 * 1024 - 2048, V))
        a('v_add_u32 v%d, %d, v%d' % (V + 3, 448 * 1024 - 2048 + 15360, V))
    def wd_srd(srdn):
        a('s_mul_i32 s48, s3, %d' % (896 * 1024))
        a('s_lshr_b32 s49, s22, 2')
        a('s_lshl_b32 s49, s49, 7')
        a('s_add_u32 s48, s48, s49')
        a('s_sub_u32 s49, %d, s48' % (1792 * 1024))
        srd_add(a, srdn, 28, 's48', 's49')
    def wd_group(V, srdn, k0, vm=None, tag=None):
        a('s_lshr_b32 s48, s23, 1')
        a('s_lshl_b32 s48, s48, 15')
        a('s_and_b32 s49, s23, 1')
        a('s_lshl_b32 s49, s49, 13')
        a('s_add_u32 s48, s48, s49')
        a('s_add_u32 s49, s48, %d' % (k0 * 16384))
        a('s_lshl_b32 s48, s23, 12')
        a('s_add_u32 m0, s48, %d' % wd_unit(k0))
        for i in range(4):
            a('buffer_load_dwordx4 v%d, s[%d:%d], s49 offen offset:%d lds' % (V + i, srdn, srdn + 3, 1024 * i))
            if vm: vm.issue(tag)

    def kv_dma(vm=None):
        a('v_lshrrev_b32 v16, 3, v0')
        a('v_lshlrev_b32 v16, 10, v16')
        a('v_and_b32 v17, 7, v0')
        a('v_lshl_add_u32 v16, v17, 4, v16')
        a('v_add_u32 v17, 7168, v16')
        a('s_lshl_b32 s50, s22, 16')
        a('s_lshl_b32 s51, s21, 7')
        a('s_add_u32 s50, s50, s51')
        A = lab('L_KD'); B = lab('L_KD')
        a('s_cmp_eq_u32 s23, 1')
        a('s_cbranch_scc1 %s' % A)
        srd(a, 44, 's6', 's7', 2048 * 1024)
        a('s_cmp_lg_u32 s23, 0')
        a('s_cbranch_scc1 %s' % B)
        a('s_sub_u32 s51, s50, 8192')
        a('v_add_u32 v18, s51, v16')
        a('v_cmp_gt_u32 vcc, 40, v0')
        a('v_cndmask_b32 v18, v18, -1, vcc')
        a('s_mov_b32 m0, %d' % KST)
        a('buffer_load_dwordx4 v18, s[44:47], 0 offen lds')
        a('s_branch %s' % B)
        a.label(A); a.reset()
        a('s_lshl_b32 s51, s21, 9')
        srd_add(a, 44, 10, 's51', 512)
        a('v_lshlrev_b32 v18, 4, v0')
        a('s_mov_b32 m0, %d' % SKS)
        a('buffer_load_dwordx4 v18, s[44:47], 0 offen lds')
        srd(a, 44, 's6', 's7', 2048 * 1024)
        a.label(B); a.reset()
        srd(a, 52, 's8', 's9', 2048 * 1024)
        a('s_lshl_b32 s51, s23, 14')
        a('s_add_u32 s50, s50, s51')
        a('s_lshl_b32 s51, s23, 11')
        a('s_add_u32 m0, s51, %d' % (KST + 1024))
        a('buffer_load_dwordx4 v16, s[44:47], s50 offen lds')
        a('buffer_load_dwordx4 v17, s[44:47], s50 offen offset:1024 lds')
        a('s_add_u32 m0, s51, %d' % VSTG)
        a('buffer_load_dwordx4 v16, s[52:55], s50 offen lds')
        a('buffer_load_dwordx4 v17, s[52:55], s50 offen offset:1024 lds')
        if vm:
            for _ in range(4): vm.issue('kv')

    def ur_addr():
        a('s_lshl_b32 s48, s23, 11')
        a('s_add_u32 s48, s48, %d' % SP)
        a('v_lshl_add_u32 v40, v0, 4, s48')
        a('s_lshl_b32 s48, s21, 18')
        a('s_lshl_b32 s49, s23, 16')
        a('s_add_u32 s48, s48, s49')
        a('s_lshl_b32 s49, s22, 7')
        a('s_sub_u32 s48, s48, s49')
        a('s_add_u32 s48, s48, %d' % (UR_OFF + 248 * 16))
        a('v_and_b32 v41, 7, v0')
        a('v_lshrrev_b32 v42, 4, v0')
        a('v_xor_b32 v41, v41, v42')
        a('v_xor_b32 v41, 7, v41')
        a('v_lshlrev_b32 v41, 4, v41')
        a('v_lshrrev_b32 v42, 3, v0')
        a('v_lshl_add_u32 v41, v42, 12, v41')
        a('v_add_u32 v41, s48, v41')
        a('v_xor_b32 v42, 64, v41')
        a('v_add_u32 v42, 32768, v42')
    def ur_read():
        a('ds_read_b128 v[44:47], v40')
        a('ds_read_b128 v[48:51], v40 offset:1024')
    def ur_store(vm=None):
        a('s_waitcnt lgkmcnt(0)')
        a('global_store_dwordx4 v41, v[44:47], s[18:19] sc1')
        a('global_store_dwordx4 v42, v[48:51], s[18:19] sc1')
        tag_load()
        if vm:
            for _ in range(2): vm.issue('u')

    VT, VF_, VMY, VPA, VW_, VONE = 216, 217, 218, 219, 220, 221
    VXS, VXR, VKV, VZG, VZS = 222, 223, 224, 225, 226
    VQR, VZT, VZ0, VZ1, VG, VOM, VPS, VPX = 227, 228, 229, 230, 231, 232, 233, 234
    R = [16, 24]
    def conv_scalars():
        a('s_lshr_b32 s52, s23, 1')
        a('s_and_b32 s53, s23, 1')
        a('s_lshl_b32 s54, s59, 1')
        a('s_add_u32 s54, s54, s52')
        a('s_lshl_b32 s54, s54, 12')
        a('s_mul_i32 s55, s52, %d' % CHS)
        a('s_add_u32 s55, s55, %d' % CONV)
        a('s_mul_i32 s58, s53, %d' % (2 * CS))
        a('s_add_u32 s58, s58, s55')
    def conv_addr1():
        a('s_lshl_b32 s48, s53, 11')
        a('v_lshl_add_u32 v64, v0, 4, s48')
        a('v_subrev_u32 v65, 8, v64')
        a('v_add_u32 v66, 1016, v64')
        a('s_add_u32 s48, s54, %d' % UR_OFF)
        a('v_add_u32 v67, s48, v64')
        a('s_add_u32 s48, s55, 32')
        a('v_add_u32 v78, s48, v64')
        a('s_add_u32 s48, s54, %d' % ZT_OFF)
        a('v_add_u32 v%d, s48, v64' % VZG)
        a('v_lshrrev_b32 v76, 1, v0')
        a('v_mul_u32_u24 v76, %d, v76' % CS)
        a('v_and_b32 v77, 1, v0')
        a('v_lshl_add_u32 v76, v77, 4, v76')
        a('v_subrev_u32 v77, 8, v0')
        a('v_and_b32 v77, 31, v77')
        a('v_lshlrev_b32 v77, 4, v77')
        a('v_add_u32 v77, %d, v77' % (URL + 4096))
        a('v_cmp_gt_u32 vcc, 8, v0')
        a('v_cndmask_b32 v76, v77, v76, vcc')
        a('v_add_u32 v76, s55, v76')
        for i in range(4): a('v_mov_b32 v%d, 0' % (32 + i))
        a('v_min_u32 v79, 3, v0')
        a('v_lshlrev_b32 v79, 4, v79')
        a('v_add_u32 v79, %d, v79' % TW)
    def conv_addr2():
        a('v_not_b32 v56, v0')
        a('v_and_b32 v56, 3, v56')
        a('v_mul_u32_u24 v56, %d, v56' % CS)
        a('v_lshrrev_b32 v57, 4, v0')
        a('v_lshl_add_u32 v56, v57, 4, v56')
        a('v_bfe_u32 v58, v0, 2, 2')
        a('v_lshl_add_u32 v56, v58, 3, v56')
        a('s_lshl_b32 s48, s53, 8')
        a('s_add_u32 s48, s48, s55')
        a('s_add_u32 s49, s48, 8')
        a('v_add_u32 v%d, s49, v56' % VT)
        a('v_and_b32 v58, 15, v0')
        a('v_lshlrev_b32 v58, 5, v58')
        a('v_lshlrev_b32 v56, 4, v57')
        a('v_sub_u32 v56, v56, v58')
        a('s_add_u32 s49, s48, %d' % (URL + 480))
        a('v_add_u32 v%d, s49, v56' % VF_)
        a('v_mov_b32 v%d, %d' % (VW_, TW))
        a('v_mov_b32 v%d, 1' % VONE)
        a('s_lshl_b32 s48, s23, 2')
        a('s_add_u32 s48, s48, %d' % (TW + W_PAIR))
        a('v_mov_b32 v%d, s48' % VMY)
        a('v_xor_b32 v%d, 4, v%d' % (VPA, VMY))
        a('s_lshl_b32 s48, s55, 1')
        a('s_sub_u32 s48, s48, s58')
        a('s_add_u32 s48, s48, %d' % (2 * CS))
        a('v_lshl_add_u32 v%d, v0, 4, s48' % VXS)
        a('v_lshl_add_u32 v%d, v0, 4, s58' % VXR)
        a('s_lshl_b32 s48, s53, 11')
        a('s_sub_u32 s48, s55, s48')
        a('s_add_u32 s48, s48, %d' % (URL + 4088 - 1536))
        a('v_lshl_add_u32 v56, v57, 3, v58')
        a('v_sub_u32 v%d, s48, v56' % VKV)
        a('v_add_u32 v%d, s58, v56' % VZS)
    def conv_addr3():
        a('s_lshl_b32 s50, s16, 1')
        a('s_add_u32 s50, s50, s3')
        a('s_lshl_b32 s50, s50, 1')
        a('s_add_u32 s50, s50, s52')
        a('s_lshr_b32 s51, s22, 2')
        a('s_lshl_b32 s51, s51, 1')
        a('s_add_u32 s51, s51, s53')
        a('v_and_b32 v56, 31, v0')
        a('v_lshrrev_b32 v57, 5, v0')
        a('v_lshlrev_b32 v58, 6, v56')
        a('v_lshl_add_u32 v58, v57, 3, v58')
        a('v_add_u32 v%d, s58, v58' % VQR)
        a('s_lshl_b32 s48, s50, 7')
        a('s_add_u32 s48, s48, %d' % GL_OFF)
        a('v_lshl_add_u32 v%d, v56, 2, s48' % VG)
        a('s_lshl_b32 s48, s52, 7')
        a('s_add_u32 s48, s48, %d' % OMG)
        a('v_lshl_add_u32 v%d, v56, 2, s48' % VOM)
        a('v_bfe_u32 v58, v0, 2, 2')
        a('v_lshl_add_u32 v58, v57, 2, v58')
        a('v_lshlrev_b32 v58, 6, v58')
        a('v_bfe_u32 v56, v0, 4, 1')
        a('v_lshl_add_u32 v58, v56, 5, v58')
        a('v_and_b32 v56, 3, v0')
        a('v_lshl_add_u32 v58, v56, 3, v58')
        a('v_add_u32 v%d, s58, v58' % VZT)
        a('v_lshrrev_b32 v57, 2, v0')
        a('v_lshlrev_b32 v56, 4, v56')
        a('s_lshl_b32 s48, s51, 17')
        a('s_lshl_b32 s49, s50, 6')
        a('s_add_u32 s48, s48, s49')
        a('s_add_u32 s48, s48, %d' % ZT_OFF)
        a('v_lshl_add_u32 v58, v57, 12, v56')
        a('v_add_u32 v%d, s48, v58' % VZ0)
        a('v_add_u32 v%d, 65536, v%d' % (VZ1, VZ0))
        a('s_lshl_b32 s48, s50, 15')
        a('s_lshl_b32 s49, s51, 6')
        a('s_add_u32 s48, s48, s49')
        a('v_lshl_add_u32 v58, v57, 10, v56')
        a('v_add_u32 v59, s48, v58')
        a('v_add_u32 v60, 16384, v59')
        a('s_mul_i32 s48, s52, %d' % (2 * CS))
        a('s_lshl_b32 s49, s53, 12')
        a('s_add_u32 s48, s48, s49')
        a('s_add_u32 s48, s48, %d' % CONV)
        a('v_lshl_add_u32 v%d, v0, 4, s48' % VPS)
        a('s_lshl_b32 s48, s59, 14')
        a('s_lshl_b32 s49, s23, 12')
        a('s_add_u32 s48, s48, s49')
        a('s_add_u32 s48, s48, %d' % PX_OFF)
        a('v_lshl_add_u32 v%d, v0, 4, s48' % VPX)
    FP = [0, 6, 8, 10, 24, 26, 30, 44]
    def urflag_load():
        a('s_lshl_b32 s46, s21, 12')
        a('s_lshl_b32 s49, s23, 10')
        a('s_add_u32 s46, s46, s49')
        a('s_add_u32 s46, s46, %d' % flag_off(0))
        sflag_loads(FP, 's46')
    def ssm_loads(vm=None):
        srd_add(a, 40, 12, 's54', 4096)
        a('buffer_load_dwordx2 v[%d:%d], v65, s[40:43], 0 offen' % (R[0], R[0] + 1))
        a('buffer_load_dwordx4 v[%d:%d], v64, s[40:43], 0 offen' % (R[0] + 2, R[0] + 5))
        a('buffer_load_dwordx2 v[%d:%d], v66, s[40:43], 0 offen' % (R[1], R[1] + 1))
        a('buffer_load_dwordx4 v[%d:%d], v64, s[40:43], 0 offen offset:1024' % (R[1] + 2, R[1] + 5))
        a('global_load_dwordx4 v[208:211], v59, s[4:5]')
        a('global_load_dwordx4 v[212:215], v60, s[4:5]')
        if vm:
            for _ in range(6): vm.issue('s')
    def d_load():
        a('s_lshl_b32 s48, s59, 2')
        a('s_load_dword s17, s[14:15], s48')
    def ur_loads(vm=None):
        a('global_load_dwordx4 v[68:71], v67, s[18:19] sc1')
        a('global_load_dwordx4 v[72:75], v67, s[18:19] offset:1024 sc1')
        if vm:
            vm.issue('r'); vm.issue('r')

    VX = 2; VW = 6; VWD = 12
    a('s_setprio %d' % opt('lprio', 2))
    a('v_lshrrev_b32 v10, 3, v0')
    a('v_lshlrev_b32 v10, 10, v10')
    a('v_and_b32 v11, 7, v0')
    a('v_lshrrev_b32 v12, 4, v0')
    a('v_xor_b32 v11, v11, v12')
    a('v_lshl_add_u32 v10, v11, 4, v10')
    a('s_lshl_b32 s49, s3, 1')
    a('s_xor_b32 s49, s49, s23')
    a('s_xor_b32 s49, s49, 2')
    a('s_lshl_b32 s49, s49, 15')
    a('v_add_u32 v%d, s49, v10' % VX)
    a('v_xor_b32 v10, 64, v%d' % VX)
    a('v_add_u32 v%d, 7168, v10' % (VX + 1))
    a('v_add_u32 v%d, 14336, v%d' % (VX + 2, VX))
    a('v_add_u32 v%d, 21504, v10' % (VX + 3))
    a('v_mul_u32_u24 v10, 3584, v12')
    a('v_and_b32 v11, 15, v0')
    a('v_lshlrev_b32 v13, 2, v12')
    a('v_xor_b32 v11, v11, v13')
    a('v_lshl_add_u32 v10, v11, 4, v10')
    a('s_mul_i32 s49, s23, 57344')
    a('v_add_u32 v%d, s49, v10' % VW)
    a('v_add_u32 v%d, %d, v%d' % (VW + 1, 13312, VW))
    a('v_xor_b32 v10, 32, v10')
    a('v_add_u32 v10, s49, v10')
    a('v_add_u32 v%d, %d, v10' % (VW + 2, 13312 * 2))
    a('v_add_u32 v%d, %d, v10' % (VW + 3, 13312 * 3))
    a('s_lshl_b32 s50, s16, 17')
    a('s_lshl_b32 s51, s17, 8')
    a('s_sub_u32 s53, %d, s51' % (512 * 3584))
    a('s_waitcnt lgkmcnt(0)')
    srd_add(a, 32, 4, 's50', 131072)
    srd_add(a, 36, 24, 's51', 's53')
    srd_add(a, 40, 26, 's51', 's53')
    vm = Counter(a, 'vmcnt', 63)
    def group(gi):
        n, reg = divmod(gi, 3); slot = n % 3
        V, Sr = [(VX, 32), (VW, 36), (VW, 40)][reg]
        a('s_mov_b32 s49, %d' % (n * 128 if reg == 0 else n * 64 * 3584))
        a('s_lshl_b32 s48, s23, 12')
        a('s_add_u32 m0, s48, %d' % (SLOT[slot] + reg * 16384))
        for i in range(4):
            a('buffer_load_dwordx4 v%d, s[%d:%d], s49 offen offset:%d lds' % (V + i, Sr, Sr + 3, 1024 * i))
            vm.issue('c%d' % n)
    kv_dma(vm)
    gi = 0
    for n in range(8):
        lim = min(24, 3 * (n + 1) + (2 if n < opt('lfull', 5) else 3))
        if n == 1: ur_read()
        if n == 6:
            urflag_load(); d_load()
        while gi < lim:
            group(gi); gi += 1
            if gi == 2:
                ur_addr(); conv_scalars(); conv_addr1(); conv_addr2(); conv_addr3(); wd_addr(VWD)
                vm.wait('kv')
                a('s_barrier')
        if n == 1: ur_store(vm)
        if n == 3:
            tag_get(52)
            L = lab('L_NOF')
            a('s_cmp_lg_u32 s23, 0')
            a('s_cbranch_scc1 %s' % L)
            a('s_waitcnt vmcnt(8)')
            flag_store(0, 54, 52)
            a.label(L)
        if n == 6: ssm_loads(vm)
        if n == 7:
            ur_loads(vm)
            wd_srd(32)
            wd_group(VWD, 32, 0, vm, 'w')
            a('ds_write_b128 v79, v[32:35]')
            a('s_waitcnt lgkmcnt(0)')
        vm.wait('c%d' % n)
        if n == 6: sflag_check(FP, 's46', 52, 8)
        if n in (0, 3, 6, 7): S.mark({0: 2, 3: 3, 6: 4, 7: 5}[n])
        a('s_barrier')
    a('s_setprio %d' % opt('bprio', 2))
    a('s_waitcnt vmcnt(4)')
    a.label('L_BUILD')
    a('ds_write_b128 v76, v[32:35]')
    for i in range(2):
        r = R[i]; o = 80 + 12 * i
        for j in range(4): a('v_alignbit_b32 v%d, v%d, v%d, 16' % (o + j, r + 2 + j, r + 1 + j))
        for j in range(4): a('v_mov_b32 v%d, v%d' % (o + 4 + j, r + 1 + j))
        for j in range(4): a('v_alignbit_b32 v%d, v%d, v%d, 16' % (o + 8 + j, r + 1 + j, r + j))
        a('ds_write_b128 v78, v[%d:%d] offset:%d' % (r + 2, r + 5, 1024 * i))
        for sg in range(3):
            a('ds_write_b128 v78, v[%d:%d] offset:%d' % (o + 4 * sg, o + 4 * sg + 3, 1024 * i + (sg + 1) * CS))
    a('ds_write_b128 v78, v[68:71] offset:%d' % (URL - 32))
    a('ds_write_b128 v78, v[72:75] offset:%d' % (URL - 32 + 1024))
    def pair_post(k):
        a('v_mov_b32 v1, %d' % k)
        a('s_waitcnt lgkmcnt(0)')
        a('ds_write_b32 v%d, v1' % VMY)
    def pair_wait(k): lds_spin(VPA, 0, k, 1, sleep=1)
    pair_post(1)
    a('s_lshl_b32 s50, s17, 16')
    a('s_and_b32 s17, s17, 0xffff0000')
    a('s_cmp_eq_u32 s52, 0')
    a('s_cselect_b32 s17, s50, s17')
    a('s_lshr_b32 s46, s22, 2')
    a('s_lshl_b32 s46, s46, 12')
    a('s_lshl_b32 s50, s23, 10')
    a('s_add_u32 s46, s46, s50')
    a('s_add_u32 s46, s46, %d' % flag_off(2))
    a('s_setprio 0')
    lds_spin(VW_, W_R6, 4, 1, sleep=1)
    a('s_setprio %d' % opt('s0prio', 2))
    for g in range(3): wd_group(VWD, 32, 4 + 4 * g)
    a('s_setprio 0')
    pair_wait(1)
    S.mark(6)
    a('s_setprio %d' % opt('convprio', 0))
    Y = 48; TB = [80, 144]; FB = [112, 176]
    lg = Counter(a, 'lgkmcnt', 14)
    def creads(rp):
        st = rp & 1; out = []
        for i in range(8):
            t = TB[st] + 4 * i; f = FB[st] + 4 * i
            out.append(('T%d_%d' % (i, rp), 'ds_read_b64 v[%d:%d], v%d offset:%d' % (t, t + 1, VT, 512 * i + 64 * rp)))
            out.append(('T%d_%d' % (i, rp), 'ds_read_b64 v[%d:%d], v%d offset:%d' % (t + 2, t + 3, VT, 512 * i + 64 * rp + 8)))
            out.append(('F%d_%d' % (i, rp), 'ds_read_b128 v[%d:%d], v%d offset:%d' % (f, f + 3, VF_, 3584 - 512 * i + 64 * rp)))
        return out
    for tag, t in creads(0):
        a(t); lg.issue(tag)
    pairs = sorted([(c, nu) for c in range(8) for nu in range(8) if c + nu <= 7], key=lambda p: (max(p), p))
    for rp in range(4):
        st = rp & 1
        nxt = creads(rp + 1) if rp < 3 else [('k', 'ds_read_b64 v[%d:%d], v%d offset:%d' % (112 + 2 * i, 113 + 2 * i, VKV, 1536 - 512 * i)) for i in range(4)]
        seen = set()
        for pi, (c, nu) in enumerate(pairs):
            lg.wait(['T%d_%d' % (c, rp), 'F%d_%d' % (nu, rp)])
            A = c + nu; d = Y + 4 * A
            C = '0' if (rp == 0 and A not in seen) else 'v[%d:%d]' % (d, d + 3)
            seen.add(A)
            t = TB[st] + 4 * c; f = FB[st] + 4 * nu
            a('v_mfma_f32_16x16x32_bf16 v[%d:%d], v[%d:%d], v[%d:%d], %s' % (d, d + 3, t, t + 3, f, f + 3, C))
            if nxt and not (rp == 0 and len(lg.q) > 8):
                tag, tx = nxt.pop(0); a(tx); lg.issue(tag)
            if rp == 3 and pi == 8:
                pair_post(2); lg.q = []; lg.issue('x')
        while nxt:
            tag, tx = nxt.pop(0); a(tx); lg.issue(tag)
        if rp == opt('w0rp', 1):
            a('s_waitcnt vmcnt(0)')
            lds_add(VW_, W_W0, VONE); lg.issue('x')
    S.mark(7)
    a('s_setprio %d' % opt('auxprio', 2))
    pair_wait(2)
    a('s_cmp_eq_u32 s53, 0')
    a('s_cbranch_scc1 L_SEND_HI')
    for i in range(4):
        a('ds_write_b128 v%d, v[%d:%d] offset:%d' % (VXS, Y + 4 * i, Y + 4 * i + 3, 1024 * i))
    pair_post(3)
    for i in range(16):
        a('v_mov_b32 v%d, v%d' % (Y + i, Y + 16 + i))
    a('s_branch L_SENT')
    a.label('L_SEND_HI'); a.reset()
    for i in range(4):
        a('ds_write_b128 v%d, v[%d:%d] offset:%d' % (VXS, Y + 16 + 4 * i, Y + 16 + 4 * i + 3, 1024 * i))
    pair_post(3)
    a.label('L_SENT')
    for i in range(4):
        y = Y + 4 * i; kv = 112 + 2 * i
        a('v_and_b32 v120, 0xffff0000, v%d' % (kv + 1))
        a('v_lshlrev_b32 v121, 16, v%d' % (kv + 1))
        a('v_and_b32 v122, 0xffff0000, v%d' % kv)
        a('v_lshlrev_b32 v123, 16, v%d' % kv)
        for r in range(4): a('v_fmac_f32 v%d, s17, v%d' % (y + r, 120 + r))
    pair_wait(3)
    for i in range(4):
        a('ds_read_b128 v[%d:%d], v%d offset:%d' % (96 + 4 * i, 99 + 4 * i, VXR, 1024 * i))
    for i in range(4):
        a('s_waitcnt lgkmcnt(3)')
        y = Y + 4 * i; y2 = 96 + 4 * i
        for r in range(4): a('v_add_f32 v%d, v%d, v%d' % (y + r, y + r, y2 + r))
        a('v_cvt_pk_bf16_f32 v%d, v%d, v%d' % (124 + 2 * i, y, y + 1))
        a('v_cvt_pk_bf16_f32 v%d, v%d, v%d' % (125 + 2 * i, y + 2, y + 3))
        a('ds_write_b64 v%d, v[%d:%d] offset:%d' % (VZS, 124 + 2 * i, 125 + 2 * i, 4096 + 512 * i))
    a('ds_read_b128 v[96:99], v%d offset:4096' % VXR)
    a('ds_read_b128 v[100:103], v%d offset:5120' % VXR)
    a('ds_write_b128 v%d, v[208:211]' % VXR)
    a('ds_write_b128 v%d, v[212:215] offset:1024' % VXR)
    for j in range(4):
        a('ds_read_b64 v[%d:%d], v%d offset:%d' % (40 + 2 * j, 41 + 2 * j, VQR, 16 * j))
    a('s_waitcnt lgkmcnt(7)')
    a('global_store_dwordx4 v%d, v[96:99], s[18:19] sc1' % VZG)
    a('s_waitcnt lgkmcnt(6)')
    a('global_store_dwordx4 v%d, v[100:103], s[18:19] offset:1024 sc1' % VZG)
    for g in range(3): a('v_mov_b32 v%d, s56' % (131 + 4 * g))
    a('s_waitcnt lgkmcnt(0)')
    lds_add(VW_, W_KV, VONE)
    for j in range(8):
        a('v_lshlrev_b32 v%d, 16, v%d' % (64 + 2 * j, 40 + j))
        a('v_and_b32 v%d, 0xffff0000, v%d' % (65 + 2 * j, 40 + j))
    a('s_waitcnt vmcnt(0)')
    S.mark(8)
    join_flag(VW_, VONE, W_Z, 3, 2, 24)
    a('s_setprio 0')
    lds_spin(VW_, W_P, 4, 1, sleep=1)
    a('s_setprio %d' % opt('auxprio', 2))
    S.mark(9)
    for kh in range(2):
        for i in range(4):
            a('ds_read_b128 v[%d:%d], v%d offset:%d' % (80 + 16 * kh + 4 * i, 83 + 16 * kh + 4 * i, VPS, kh * CHS + 1024 * i))
    a('s_waitcnt lgkmcnt(0)')
    lds_add(VW_, W_X, VONE)
    for r in range(16): a('v_add_f32 v%d, v%d, v%d' % (80 + r, 80 + r, 96 + r))
    for e in range(8):
        a('v_cvt_pk_bf16_f32 v%d, v%d, v%d' % (128 + 4 * (e // 3) + e % 3, 80 + 2 * e, 81 + 2 * e))
    for g in range(3):
        a('global_store_dwordx4 v%d, v[%d:%d], s[18:19] offset:%d sc1' % (VPX, 128 + 4 * g, 131 + 4 * g, 1024 * g))
    sflag_loads(FP, 's46')
    sflag_check(FP, 's46', 24, 8)
    lds_add(VW_, W_X, VONE)
    a('s_setprio 0')
    lds_spin(VW_, W_X, 12, 1, sleep=1)
    a('s_setprio %d' % opt('auxprio', 2))
    S.mark(10)
    a('global_load_dword v32, v%d, s[18:19] sc1' % VG)
    a('global_load_dwordx4 v[24:27], v%d, s[18:19] sc1' % VZ0)
    a('global_load_dwordx4 v[28:31], v%d, s[18:19] sc1' % VZ1)
    a('s_waitcnt vmcnt(2)')
    a('v_sub_f32 v33, 1.0, v32')
    a('ds_write_b32 v%d, v33' % VOM)
    for j in range(16):
        a('v_mul_f32 v%d, v32, v%d' % (64 + j, 64 + j))
    a('s_waitcnt vmcnt(0)')
    a('ds_write_b128 v%d, v[24:27] offset:4608' % VXR)
    a('ds_write_b128 v%d, v[28:31] offset:5632' % VXR)
    for j in range(4):
        a('ds_read_b64_tr_b16 v[%d:%d], v%d offset:%d' % (40 + 2 * j, 41 + 2 * j, VZT, 4608 + 512 * j))
    for j in range(8):
        if j % 2 == 0: a('s_waitcnt lgkmcnt(3)')
        a('v_lshlrev_b32 v48, 16, v%d' % (40 + j))
        a('v_and_b32 v49, 0xffff0000, v%d' % (40 + j))
        a('v_mul_f32 v%d, v48, v%d' % (64 + 2 * j, 64 + 2 * j))
        a('v_mul_f32 v%d, v49, v%d' % (65 + 2 * j, 65 + 2 * j))
        if j & 1:
            a('ds_write_b128 v%d, v[%d:%d] offset:%d' % (VXR, 62 + 2 * j, 65 + 2 * j, (j >> 1) * PU))
    a.label('L_FINAL'); a.reset()
    a('s_nop 1')
    a('s_lshr_b32 s50, s20, 2')
    a('s_lshl_b32 s49, s23, 7')
    a('s_mul_i32 s48, s50, %d' % (8 * PU))
    a('s_add_u32 s48, s48, s49')
    a('s_add_u32 s48, s48, %d' % PART)
    a('v_and_b32 v2, 7, v0')
    a('v_mul_u32_u24 v3, %d, v2' % PU)
    a('v_lshrrev_b32 v4, 3, v0')
    a('v_lshl_add_u32 v3, v4, 4, v3')
    a('v_add_u32 v3, s48, v3')
    a('s_mul_i32 s48, s50, %d' % CHS)
    a('s_add_u32 s48, s48, s49')
    a('s_add_u32 s48, s48, %d' % CONV)
    a('v_and_b32 v7, 3, v0')
    a('v_mul_u32_u24 v7, %d, v7' % PU)
    a('v_bfe_u32 v5, v0, 2, 1')
    a('v_mul_u32_u24 v5, %d, v5' % (2 * CS))
    a('v_add_u32 v7, v7, v5')
    a('v_lshl_add_u32 v7, v4, 4, v7')
    a('v_add_u32 v7, s48, v7')
    a('s_lshl_b32 s48, s20, 5')
    a('s_add_u32 s48, s48, %d' % OMG)
    a('v_lshl_add_u32 v5, v4, 2, s48')
    a('s_lshl_b32 s48, s16, 1')
    a('s_add_u32 s48, s48, s3')
    a('s_lshl_b32 s48, s48, 16')
    a('s_lshl_b32 s49, s20, 13')
    a('s_add_u32 s48, s48, s49')
    a('s_lshr_b32 s49, s22, 2')
    a('s_lshl_b32 s49, s49, 7')
    a('s_add_u32 s48, s48, s49')
    a('v_lshlrev_b32 v6, 10, v4')
    a('v_lshl_add_u32 v6, v2, 4, v6')
    a('v_add_u32 v6, s48, v6')
    a('s_waitcnt lgkmcnt(0)')
    M(11)
    a('s_barrier')
    M(12)
    for hf in range(2): a('ds_read_b128 v[%d:%d], v3 offset:%d' % (16 + 4 * hf, 19 + 4 * hf, hf * 512))
    for hf in range(2): a('ds_read_b128 v[%d:%d], v3 offset:%d' % (24 + 4 * hf, 27 + 4 * hf, PS + hf * 512))
    for hf in range(2): a('ds_read_b128 v[%d:%d], v7 offset:%d' % (32 + 4 * hf, 35 + 4 * hf, hf * 512))
    a('ds_read_b32 v8, v5')
    a('s_waitcnt lgkmcnt(3)')
    for r in range(0, 8, 2): a('v_pk_add_f32 v[%d:%d], v[%d:%d], v[%d:%d]' % (16 + r, 17 + r, 16 + r, 17 + r, 24 + r, 25 + r))
    a('s_waitcnt lgkmcnt(0)')
    for r in range(8): a('v_fmac_f32 v%d, v8, v%d' % (32 + r, 16 + r))
    for r in range(4): a('v_cvt_pk_bf16_f32 v%d, v%d, v%d' % (40 + r, 32 + 2 * r, 33 + 2 * r))
    a('global_store_dwordx4 v6, v[40:43], s[60:61]%s' % (' sc1' if opt('osc1', 0) else ''))
    S.flush(100)
    a.label('L_END')
    a('s_endpgm')

    a.label('L_SPARE'); a.reset()
    a('s_cmp_eq_u32 s20, 4')
    a('s_cbranch_scc1 L_ENG')
    for i in range(4): a('v_mov_b32 v%d, 0' % (32 + i))
    a('v_min_u32 v79, 3, v0')
    a('v_lshlrev_b32 v79, 4, v79')
    a('v_add_u32 v79, %d, v79' % TW)
    a('ds_write_b128 v79, v[32:35]')
    a('s_waitcnt lgkmcnt(0)')
    a('s_barrier')
    a('s_branch L_SP1')
    a.label('L_ENG'); a.reset()
    a('s_setprio 3')
    a('s_lshl_b32 s49, s21, 18')
    a('s_lshl_b32 s50, s22, 16')
    a('s_add_u32 s49, s49, s50')
    a('v_lshl_add_u32 v1, v0, 10, s49')
    a('v_min_u32 v2, 55, v0')
    a('v_mul_u32_u24 v3, 4682, v2')
    a('v_lshrrev_b32 v3, 16, v3')
    a('v_mul_u32_u24 v4, 14, v3')
    a('v_sub_u32 v4, v2, v4')
    a('v_mul_u32_u24 v3, 3584, v3')
    a('v_lshl_add_u32 v3, v4, 7, v3')
    a('s_mul_i32 s49, s16, %d' % (4 * 3584))
    a('s_mul_i32 s50, s3, 1792')
    a('s_add_u32 s49, s49, s50')
    a('v_add_u32 v3, s49, v3')
    a('v_and_b32 v5, 31, v0')
    a('v_lshlrev_b32 v5, 7, v5')
    a('v_lshrrev_b32 v6, 5, v0')
    a('v_mul_u32_u24 v6, %d, v6' % (448 * 1024))
    a('v_add_u32 v6, v5, v6')
    a('s_mul_i32 s49, s3, %d' % (896 * 1024))
    a('s_lshl_b32 s50, s16, 12')
    a('s_add_u32 s49, s49, s50')
    a('v_add_u32 v6, s49, v6')
    a('s_waitcnt lgkmcnt(0)')
    srd(a, 32, 's4', 's5', 2048 * 1024)
    srd(a, 36, 's24', 's25', 512 * 3584)
    srd(a, 40, 's26', 's27', 512 * 3584)
    nt = [0]
    def touch(t):
        a(t); a('s_waitcnt vmcnt(%d)' % ENGQ)
        nt[0] += 1
        if nt[0] == ENGA: a('s_barrier')
    if ENGG0: touch('buffer_load_dword v20, v3, s[36:39], 0 offen')
    touch('buffer_load_dword v20, v3, s[40:43], 0 offen')
    for c in range(1, 8):
        a('s_mov_b32 s49, %d' % (c * 64 * 3584))
        touch('buffer_load_dword v20, v1, s[32:35], 0 offen offset:%d' % (c * 128))
        touch('buffer_load_dword v20, v3, s[36:39], s49 offen')
        touch('buffer_load_dword v20, v3, s[40:43], s49 offen')
    S.mark(2)
    srd(a, 36, 's28', 's29', 1792 * 1024)
    for i in range(7):
        a('s_mov_b32 s49, %d' % (i * 65536))
        touch('buffer_load_dword v20, v6, s[36:39], s49 offen')
    a.label('L_SP1')
    a('s_setprio 3')
    conv_scalars(); conv_addr1(); conv_addr2(); conv_addr3(); wd_addr(VWD)
    a('s_barrier')
    S.mark(3)
    tag_load(); d_load()
    ssm_loads()
    tag_get(52)
    urflag_load()
    sflag_check(FP, 's46', 52, 8)
    a('s_barrier')
    S.mark(4)
    ur_loads()
    wd_srd(32)
    wd_group(VWD, 32, 0)
    a('s_waitcnt vmcnt(4)')
    a('s_branch L_BUILD')

    a.label('L_COMPUTE'); a.reset()
    XA = 224; WA = 226; VST = 230; VHS = 231; VL = 232; CW = 233; CO = 234; CWD = 235
    VTR = 239; VFA = 243; VFB = 244; VSG = 245; VPW = 246; VPL = 247
    KR = 40; VR = 51; SK = 60; KF = 64; WF = 86; VF = 94; KS = 110; OUT = 16
    a('v_lshrrev_b32 v10, 5, v0')
    a('v_and_b32 v11, 31, v0')
    a('s_lshl_b32 s51, s20, 11')
    a('v_lshlrev_b32 v12, 10, v10')
    a('v_lshl_add_u32 v12, v11, 2, v12')
    a('v_add_u32 v12, s51, v12')
    a('v_add_u32 v12, %d, v12' % KST)
    a('v_lshlrev_b32 v14, 4, v11')
    a('v_add_u32 v14, %d, v14' % SKS)
    a('s_memrealtime s[56:57]')
    a('s_waitcnt lgkmcnt(0)')
    L = lab('L_NOTAG')
    a('s_cmp_ge_u32 s22, 4')
    a('s_cbranch_scc1 L_NOSPK')
    a('s_or_b32 s48, s2, s20')
    a('s_cmp_lg_u32 s48, 0')
    a('s_cbranch_scc1 %s' % L)
    a('s_or_b32 s56, s56, 1')
    a('v_mov_b32 v2, s56')
    a('v_mov_b32 v3, s57')
    a('v_mov_b32 v1, 0')
    a('s_mov_b64 exec, 1')
    a('global_store_dwordx2 v1, v[2:3], s[62:63] sc1')
    a('s_mov_b64 exec, -1')
    a.label(L)
    a('s_barrier')
    kv_dma()
    a.label('L_NOSPK')
    a('s_lshl_b32 s51, s20, 1')
    a('v_add_u32 v10, s51, v10')
    a('v_and_b32 v15, 7, v0')
    a('v_xor_b32 v10, v10, v15')
    a('v_lshlrev_b32 v10, 4, v10')
    a('v_lshl_add_u32 v10, v11, 8, v10')
    a('v_add_u32 v24, %d, v10' % SP)
    a('s_setprio 1')
    a('v_mov_b32 v%d, v0' % VL)
    a('s_and_b32 s54, s20, 1')
    a('s_lshr_b32 s55, s20, 1')
    a('v_and_b32 v1, 15, v0')
    a('v_lshlrev_b32 v1, 7, v1')
    a('v_add_u32 v1, %d, v1' % SLOT[0])
    a('v_lshrrev_b32 v2, 4, v0')
    a('v_bfe_u32 v3, v0, 1, 3')
    a('v_xor_b32 v3, v2, v3')
    a('v_lshl_add_u32 v%d, v3, 4, v1' % XA)
    a('v_xor_b32 v%d, 64, v%d' % (XA + 1, XA))
    a('v_bfe_u32 v1, v0, 2, 2')
    a('v_lshl_add_u32 v3, v2, 3, v1')
    a('v_lshlrev_b32 v3, 8, v3')
    a('v_and_b32 v2, 1, v2')
    a('v_lshl_add_u32 v1, v1, 1, v2')
    a('s_lshl_b32 s50, s20, 1')
    a('v_xor_b32 v1, s50, v1')
    a('v_lshl_add_u32 v3, v1, 5, v3')
    a('v_and_b32 v1, 3, v0')
    a('v_lshl_add_u32 v3, v1, 3, v3')
    a('v_add_u32 v%d, %d, v3' % (WA, SLOT[0] + 16384))
    a('v_xor_b32 v%d, 32, v%d' % (WA + 1, WA))
    a('v_lshrrev_b32 v1, 4, v0')
    a('v_lshlrev_b32 v1, 9, v1')
    a('v_and_b32 v2, 15, v0')
    a('v_lshl_add_u32 v%d, v2, 4, v1' % VHS)
    a('v_lshlrev_b32 v%d, 4, v0' % VST)
    a('s_lshl_b32 s48, s16, 2')
    a('s_add_u32 s48, s48, s54')
    a('s_lshl_b32 s49, s3, 1')
    a('s_add_u32 s41, s48, s49')
    a('s_sub_u32 s40, s48, s49')
    a('s_add_u32 s40, s40, 2')
    a('s_mul_i32 s40, s40, 112')
    a('s_mul_i32 s41, s41, 112')
    a('s_mul_i32 s48, s54, 112')
    a('s_lshl_b32 s49, s17, 3')
    a('s_sub_u32 s48, s49, s48')
    a('s_lshl_b32 s49, s20, 1')
    a('s_add_u32 s48, s48, s49')
    a('s_add_u32 s8, s40, s48')
    a('s_add_u32 s10, s41, s48')
    a('s_lshl_b32 s8, s8, 10')
    a('s_lshl_b32 s10, s10, 10')
    a('s_add_u32 s9, s8, %d' % (112 * 1024))
    a('s_add_u32 s11, s10, %d' % (112 * 1024))
    a('s_mul_i32 s48, s3, 56')
    a('s_mul_i32 s49, s55, 28')
    a('s_add_u32 s48, s48, s49')
    a('s_add_u32 s42, s40, s48')
    a('s_add_u32 s43, s41, s48')
    a('s_lshl_b32 s42, s42, 10')
    a('s_lshl_b32 s43, s43, 10')
    srd_add(a, 44, 18, H_OFF, 64 * 112 * 1024)
    wd_addr(CWD); wd_srd(36)
    a('v_mov_b32 v%d, %d' % (CW, TW))
    a('v_mov_b32 v%d, 1' % CO)
    a('v_bfe_u32 v1, v0, 2, 2')
    a('v_lshrrev_b32 v2, 5, v0')
    a('v_lshl_add_u32 v2, v2, 2, v1')
    a('v_lshlrev_b32 v2, 7, v2')
    a('v_lshrrev_b32 v1, 1, v1')
    a('v_lshl_add_u32 v2, v1, 6, v2')
    a('v_bfe_u32 v1, v0, 4, 1')
    a('v_lshl_add_u32 v2, v1, 5, v2')
    a('v_and_b32 v1, 3, v0')
    a('v_lshl_add_u32 v2, v1, 3, v2')
    a('s_lshl_b32 s48, s55, 11')
    a('v_add_u32 v%d, s48, v2' % VTR)
    a('v_xor_b32 v%d, 64, v%d' % (VTR + 1, VTR))
    a('v_add_u32 v%d, 65536, v%d' % (VTR + 2, VTR))
    a('v_add_u32 v%d, 65536, v%d' % (VTR + 3, VTR + 1))
    a('s_lshl_b32 s48, s21, 5')
    a('s_and_b32 s49, s22, 3')
    a('s_add_u32 s48, s48, s49')
    a('s_lshl_b32 s48, s48, 7')
    a('s_add_u32 s50, s48, %d' % flag_off(3))
    a('v_and_b32 v2, 7, v0')
    a('v_lshl_add_u32 v%d, v2, 9, s50' % VFB)
    a('s_mul_i32 s49, s55, 1536')
    a('s_add_u32 s48, s48, s49')
    a('s_add_u32 s48, s48, %d' % (flag_off(1) + 512))
    a('v_lshl_add_u32 v%d, v1, 9, s48' % VFA)
    a('s_mul_i32 s48, s55, %d' % CHS)
    a('s_mul_i32 s49, s54, %d' % (2 * CS))
    a('s_add_u32 s48, s48, s49')
    a('s_add_u32 s48, s48, %d' % CONV)
    a('v_lshl_add_u32 v%d, v0, 4, s48' % VSG)
    a('s_mul_i32 s48, s55, %d' % PS)
    a('s_mul_i32 s49, s54, %d' % (8 * PU))
    a('s_add_u32 s48, s48, s49')
    a('s_add_u32 s48, s48, %d' % PART)
    a('v_lshl_add_u32 v%d, v0, 4, s48' % VPW)
    a('s_xor_b32 s48, s59, 32')
    a('s_lshl_b32 s48, s48, 14')
    a('s_lshl_b32 s49, s54, 13')
    a('s_add_u32 s48, s48, s49')
    a('s_lshl_b32 s49, s55, 12')
    a('s_add_u32 s48, s48, s49')
    a('s_add_u32 s48, s48, %d' % PX_OFF)
    a('v_lshl_add_u32 v%d, v0, 4, s48' % VPL)
    a('s_cmp_ge_u32 s22, 4')
    a('s_cbranch_scc1 L_BM1')
    a('s_waitcnt vmcnt(0)')
    lds_add(CW, W_R7, CO)
    lds_spin(CW, W_R7, 4, 1, sleep=1)
    a('s_branch L_BM1D')
    a.label('L_BM1'); a.reset()
    a('s_barrier')
    a.label('L_BM1D')
    a('ds_read_b128 v[%d:%d], v14' % (SK, SK + 3))
    for i in range(11):
        a('ds_read_b32 v%d, v12 offset:%d' % (KR + i, (5 + i) * 128))
    for i in range(8):
        a('ds_read_b32 v%d, v12 offset:%d' % (VR + i, VSTG - KST + i * 128))
    a('s_waitcnt lgkmcnt(8)')
    for j in range(4):
        for c in range(2):
            srcr = SK + 2 * c + (j >> 1)
            if j & 1: a('v_and_b32 v%d, 0xffff0000, v%d' % (WF + 2 * j + c, srcr))
            else: a('v_lshlrev_b32 v%d, 16, v%d' % (WF + 2 * j + c, srcr))
    for i in range(11):
        a('v_lshlrev_b32 v%d, 16, v%d' % (KF + 2 * i, KR + i))
        a('v_and_b32 v%d, 0xffff0000, v%d' % (KF + 2 * i + 1, KR + i))
    for j in (3, 2, 1, 0):
        for r in range(8):
            k = KF + 2 * (r + 3 - j); d = KS + 2 * r; w = WF + 2 * j
            if j == 3: a('v_pk_mul_f32 v[%d:%d], v[%d:%d], v[%d:%d]' % (d, d + 1, k, k + 1, w, w + 1))
            else: a('v_pk_fma_f32 v[%d:%d], v[%d:%d], v[%d:%d], v[%d:%d]' % (d, d + 1, k, k + 1, w, w + 1, d, d + 1))
    a('s_waitcnt lgkmcnt(0)')
    for i in range(8):
        a('v_lshlrev_b32 v%d, 16, v%d' % (VF + 2 * i, VR + i))
        a('v_and_b32 v%d, 0xffff0000, v%d' % (VF + 2 * i + 1, VR + i))
    for r in range(8):
        d = KS + 2 * r; v = VF + 2 * r
        a('v_pk_mul_f32 v[%d:%d], v[%d:%d], v[%d:%d]' % (d, d + 1, d, d + 1, v, v + 1))
    for c in range(2):
        for j in range(4):
            a('v_cvt_pk_bf16_f32 v%d, v%d, v%d' % (OUT + 4 * c + j, KS + 2 * (7 - 2 * j) + c, KS + 2 * (6 - 2 * j) + c))
        a('ds_write_b128 v24, v[%d:%d] offset:%d' % (OUT + 4 * c, OUT + 4 * c + 3, 128 * c))
    a('s_waitcnt lgkmcnt(0)')
    a('s_cmp_lt_u32 s22, 4')
    a('s_cbranch_scc1 L_SPC')
    a('s_barrier')
    S.mark(2)

    lg = Counter(a, 'lgkmcnt', 14)
    def acc(tb, fb, gu): return ((tb * 2 + fb) * 2 + gu) * 4
    def xr(st, tb): return 128 + 48 * st + 4 * tb
    def wr(st, gu, fb): return 128 + 48 * st + 32 + 8 * fb + 4 * gu
    steps = [(c, ks, (0, 1)) for c in range(6) for ks in range(2)]
    steps += [(c, ks, (t,)) for t in range(2) for c in (6, 7) for ks in range(2)]
    def reads(si):
        c, ks, ts = steps[si]; st = si & 1
        out = []
        def x(tb):
            r = xr(st, tb)
            out.append(('x%d_%d' % (tb, si), 'ds_read_b128 v[%d:%d], v%d offset:%d' % (r, r + 3, XA + ks, tb * 2048)))
        def w(gu, fb):
            r = wr(st, gu, fb)
            for t2 in range(2):
                out.append(('w%d%d_%d' % (gu, fb, si), 'ds_read_b64_tr_b16 v[%d:%d], v%d offset:%d' % (r + 2 * t2, r + 2 * t2 + 1, WA + fb, gu * 16384 + (32 * ks + 4 * t2) * 256)))
        tbs = [4 * t + s for t in ts for s in range(4)]
        x(tbs[0])
        for fb in range(2):
            for gu in range(2): w(gu, fb)
        for tb in tbs[1:]: x(tb)
        return out
    def epi(t):
        out = []
        for tb in range(4 * t, 4 * t + 4):
            for fb in range(2):
                g = acc(tb, fb, 0); u = acc(tb, fb, 1)
                for r in range(4): out.append('v_mul_f32 v%d, v%d, v%d' % (g + r, g + r, u + r))
            o = acc(tb, 0, 1)
            for fb in range(2):
                g = acc(tb, fb, 0)
                out.append('v_cvt_pk_bf16_f32 v%d, v%d, v%d' % (o + 2 * fb, g, g + 1))
                out.append('v_cvt_pk_bf16_f32 v%d, v%d, v%d' % (o + 2 * fb + 1, g + 2, g + 3))
            out.append('buffer_store_dwordx4 v[%d:%d], v%d, s[44:47], s%d offen offset:%d sc1' % (o, o + 3, VHS, 8 + (tb >> 1), (tb & 1) * 256))
        return out
    for tag, t in reads(0):
        a(t); lg.issue(tag)
    fill = []
    for si, (c, ks, ts) in enumerate(steps):
        st = si & 1
        last = si + 1 == len(steps)
        nxt = reads(si + 1) if not last else []
        full = len(ts) > 1
        tbs = [4 * t + s for t in ts for s in range(4)]
        order = [(tb, fb, gu) for tb in tbs for fb in range(2) for gu in range(2)]
        barrier = ks == 1 and (full or (ts == (0,) and c == 6))
        release = ks == 1 and ts == (1,)
        pre = []
        if ks == 1 and not last:
            delta = SLOT[steps[si + 1][0] % 3] - SLOT[c % 3]
            pre = ['v_add_u32 v%d, %d, v%d' % (r, delta & 0xffffffff, r) for r in list(range(XA, XA + 2)) + list(range(WA, WA + 2))]
        if (barrier and full) or release: lg.wait_all()
        if si == 2: tag_load()
        if PH1 == 2 and si >= 12: S.mark(si - 7)
        if si == 16:
            fill = epi(0)
            if opt('nost', 0): fill = [t for t in fill if not t.startswith('buffer_store')]
        hold = 2 if pre else 0
        for mi, (tb, fb, gu) in enumerate(order):
            lg.wait(['x%d_%d' % (tb, si), 'w%d%d_%d' % (gu, fb, si)])
            d = acc(tb, fb, gu); A = wr(st, gu, fb); B = xr(st, tb)
            C = '0' if si == 0 else 'v[%d:%d]' % (d, d + 3)
            a('v_mfma_f32_16x16x32_bf16 v[%d:%d], v[%d:%d], v[%d:%d], %s' % (d, d + 3, A, A + 3, B, B + 3, C))
            if release and mi == 0:
                lds_add(CW, W_R6 if c == 6 else W_R7, CO); lg.issue('rel')
            if mi < hold:
                a(pre.pop(0)); a(pre.pop(0))
                if mi == hold - 1 and barrier:
                    a('s_barrier')
                    if PH1 == 1: M(6 + c, True)
                    if PH1 == 1 and c in (2, 4): S.mark(c + 1, real=True)
                continue
            k = 0
            if nxt:
                tag, tx = nxt.pop(0); a(tx); lg.issue(tag); k = 1
            while fill and k < opt('fillper', 2):
                a(fill.pop(0)); k += 1
        assert not nxt
    for t in fill: a(t)
    print('epilogue A instructions left after the loop:', len(fill))
    S.mark(4)
    tag_get(128)
    a('s_waitcnt vmcnt(0)')
    join_flag(CW, CO, W_HA, 3, 1, 128)
    M(6)
    a('s_nop 4')
    for t in epi(1): a(t)
    M(5)
    lds_spin(CW, W_R7, 4, 132, sleep=1)
    a.label('L_S1')
    a('global_load_dwordx2 v[208:209], v%d, s[18:19] sc1' % VFA)
    a('s_waitcnt vmcnt(0)')
    join_flag(CW, CO, W_HB, 3, 3, 132)
    flag_poll(VFA, 208, 2, loaded=True)
    M(7)
    ACC = [0, 32]; WB = 64; HB = 80; PL = 212
    vm = Counter(a, 'vmcnt', 63); lg = Counter(a, 'lgkmcnt', 14)
    def issue(i):
        ph, k = divmod(i, 28); h = HB + 4 * (i % NH)
        if k % 4 == 0 and k: a('s_add_u32 s%d, s%d, 4096' % (42 + ph, 42 + ph))
        a('buffer_load_dwordx4 v[%d:%d], v%d, s[44:47], s%d offen offset:%d sc1' % (h, h + 3, VST, 42 + ph, 1024 * (k % 4))); vm.issue('h%d' % i)
    def trreads(i):
        k = i % 28; st = i & 1; u = wd_unit(k); hi = 2 if u >= 65536 - 4096 + 1 and u >= 65536 else 0
        for db in range(2):
            for t2 in range(2):
                w = WB + 8 * st + 4 * db + 2 * t2
                a('ds_read_b64_tr_b16 v[%d:%d], v%d offset:%d' % (w, w + 1, VTR + hi + db, u - (65536 if hi else 0) + t2 * 1024)); lg.issue('w%d' % i)
    def ploads(vm=None):
        for g in range(3):
            a('global_load_dwordx4 v[%d:%d], v%d, s[18:19] offset:%d sc1' % (PL + 4 * g, PL + 3 + 4 * g, VPL, 1024 * g))
            if vm: vm.issue('pl')
    for i in range(NHA): issue(i)
    nxti = NHA
    for g in range(3): wd_group(CWD, 36, 16 + 4 * g, vm, 's1')
    s1done = False
    lds_spin(CW, W_W0, 4, 210, sleep=1)
    trreads(0)
    for i in range(56):
        ph, k = divmod(i, 28); st = i & 1
        if i == 15:
            lds_spin(CW, W_W1, 4, 210, sleep=1); lg.q = []
        if i + 1 < 56: trreads(i + 1)
        vm.wait('h%d' % i)
        if not s1done and 's1' not in vm.q:
            assert i < 15
            s1done = True
            lds_add(CW, W_W1, CO); lg.issue('s1')
        lg.wait('w%d' % i)
        if i == 1: M(8)
        for db in range(2):
            d = ACC[ph] + 16 * db; w = WB + 8 * st + 4 * db; h = HB + 4 * (i % NH)
            C = '0' if k == 0 else 'v[%d:%d]' % (d, d + 15)
            a('v_mfma_f32_32x32x16_bf16 v[%d:%d], v[%d:%d], v[%d:%d], %s' % (d, d + 15, w, w + 3, h, h + 3, C))
        if i == 28:
            M(9)
            lds_spin(CW, W_KV, 4, 210, sleep=1); lg.q = []
            for u in range(8):
                a('ds_write_b128 v%d, v[%d:%d] offset:%d' % (VSG, 4 * u, 4 * u + 3, 1024 * u)); lg.issue('p')
            lds_add(CW, W_P, CO); lg.issue('p')
        if i == 44:
            lds_add(CW, W_G2, CO); lg.issue('g')
        for _ in range(2):
            if nxti < 56 and nxti <= i + (NH if i >= 28 else NHA):
                if nxti == 28 - NHA:
                    a('global_load_dwordx2 v[208:209], v%d, s[18:19] sc1' % VFB); vm.issue('fb')
                if nxti == 28:
                    vm.wait('fb')
                    flag_poll(VFB, 208, 4, loaded=True)
                issue(nxti); nxti += 1
                if nxti == 56:
                    lds_add(CW, W_X, CO); lg.issue('x')
        if i == PSTEP: ploads(vm)
    M(10)
    a('s_mov_b32 s49, 0')
    a.label('L_PCHK')
    a('s_waitcnt vmcnt(0)')
    for g in range(3): a('v_xor_b32 v%d, s56, v%d' % (PL + 3 + 4 * g, PL + 3 + 4 * g))
    a('v_or3_b32 v210, v%d, v%d, v%d' % (PL + 3, PL + 7, PL + 11))
    a('v_cmp_ne_u32 vcc, 0, v210')
    a('s_cmp_eq_u64 vcc, 0')
    a('s_cbranch_scc1 L_POK')
    a('s_add_u32 s49, s49, 1')
    a('s_cmp_ge_u32 s49, %d' % SPINMAX)
    a('s_cbranch_scc1 L_POK')
    a('s_sleep %d' % opt('pbackoff', 4))
    ploads()
    a('s_branch L_PCHK')
    a.label('L_POK'); a.reset()
    M(3)
    for e in range(8):
        p = PL + 4 * (e // 3) + e % 3
        a('v_lshlrev_b32 v%d, 16, v%d' % (2 * e, p))
        a('v_and_b32 v%d, 0xffff0000, v%d' % (2 * e + 1, p))
    a('s_cmp_eq_u32 s55, 0')
    a('s_cbranch_scc1 L_PADD0')
    for r in range(16): a('v_add_f32 v%d, v%d, v%d' % (48 + r, 48 + r, r))
    a('s_branch L_PADD1')
    a.label('L_PADD0'); a.reset()
    for r in range(16): a('v_add_f32 v%d, v%d, v%d' % (32 + r, 32 + r, r))
    a.label('L_PADD1')
    lds_spin(CW, W_G2, 4, 210, sleep=1)
    for u in range(8):
        a('ds_write_b128 v%d, v[%d:%d] offset:%d' % (VPW, 32 + 4 * u, 35 + 4 * u, u * PU))
    a('v_mov_b32 v0, v%d' % VL)
    a('s_branch L_FINAL')

    a.label('L_SPC'); a.reset()
    QR = 100; GW = 80; LG = 84
    lds_add(CW, W_R6, CO)
    ur_addr()
    lds_spin(CW, W_R6, 4, 1, sleep=1)
    ur_read()
    ur_store()
    a('s_lshl_b32 s48, s16, 1')
    a('s_add_u32 s48, s48, s3')
    a('s_lshl_b32 s48, s48, 2')
    a('s_add_u32 s50, s48, s20')
    a('s_lshl_b32 s49, s50, 14')
    srd_add(a, 32, 4, 's49', 16384)
    a('s_lshl_b32 s50, s50, 6')
    a('s_add_u32 s50, s50, %d' % GL_OFF)
    a('v_mov_b32 v10, s50')
    a('s_waitcnt vmcnt(0)')
    tag_get(52)
    join_flag(CW, CO, W_HA, 3, 0, 52)
    S.mark(2)
    a('s_barrier')
    a('global_load_dwordx4 v[%d:%d], v%d, s[30:31]' % (GW, GW + 3, VST))
    for r in range(16):
        if r % 4 == 0: a('s_mov_b32 s49, %d' % (1024 * r))
        a('buffer_load_dwordx4 v[%d:%d], v%d, s[32:35], s49 offen offset:%d' % (QR + 4 * r, QR + 4 * r + 3, VST, 1024 * (r % 4)))
    a('s_barrier')
    a('s_waitcnt vmcnt(0)')
    for r in range(16):
        a('v_dot2_f32_bf16 v%d, v%d, v%d, 0' % (LG + r, QR + 4 * r, GW))
    for i in range(1, 4):
        for r in range(16):
            a('v_dot2_f32_bf16 v%d, v%d, v%d, v%d' % (LG + r, QR + 4 * r + i, GW + i, LG + r))
    for m in ('quad_perm:[1,0,3,2] row_mask:0xf', 'quad_perm:[2,3,0,1] row_mask:0xf', 'row_half_mirror row_mask:0xf', 'row_mirror row_mask:0xf',
              'row_bcast:15 row_mask:0xa', 'row_bcast:31 row_mask:0xc'):
        for r in range(16):
            a('v_add_f32_dpp v%d, v%d, v%d %s bank_mask:0xf' % (LG + r, LG + r, LG + r, m))
    for r in range(16): a('v_mul_f32 v%d, 0xbfb8aa3b, v%d' % (LG + r, LG + r))
    for r in range(16): a('v_exp_f32 v%d, v%d' % (LG + r, LG + r))
    for r in range(16): a('v_add_f32 v%d, 1.0, v%d' % (LG + r, LG + r))
    for r in range(16): a('v_rcp_f32 v%d, v%d' % (LG + r, LG + r))
    a('s_mov_b32 exec_lo, 0')
    a('s_mov_b32 exec_hi, 0x80000000')
    for i in range(4):
        a('global_store_dwordx4 v10, v[%d:%d], s[18:19] offset:%d sc1' % (LG + 4 * i, LG + 4 * i + 3, 16 * i))
    a('s_mov_b64 exec, -1')
    S.mark(5)
    a('s_branch L_S1')
    a.label('L_LAST')
    a('s_endpgm')

def main():
    a = Asm()
    out = HEADER
    out += '; @launch grid=(256,1,1) block=(512,1,1) lds=%d\n' % LDS
    out += '.amdgcn_target "amdgcn-amd-amdhsa--gfx950"\n.text\n'
    gen(a)
    out += a.text()
    out += '.section .rodata,"a"\n' + kdesc(KN, 252, 64)
    open(outpath(), 'w').write(out)
    print('wrote', outpath(), 'nops inserted:', a.npad)

main()
```

```python
import sys
from asmlib import Asm, Counter

NAME = 'gated_mix__ssm_conv_h3__glu_gated_bilinear__prompt'
HEADER = open('cdna_kernels/%s.s.ref' % NAME).read().split('; Override launch geometry')[0]
PROF = '--prof' in sys.argv
DBGOUT = '--dbgout' in sys.argv
def opt(name, default):
    for s in sys.argv[1:]:
        if s.startswith('--%s=' % name): return type(default)(s.split('=', 1)[1])
    return default

H_OFF = 0
UR_OFF = 0x800000
ZT_OFF = 0xA00000
GL_OFF = 0xC00000
FL_OFF = 0xC10000
ST_OFF = 0xD00000

def srd(a, d, lo, hi, nrec):
    a('s_mov_b32 s%d, %s' % (d, lo))
    a('s_mov_b32 s%d, %s' % (d + 1, hi))
    a('s_mov_b32 s%d, %s' % (d + 2, nrec))
    a('s_mov_b32 s%d, 0x00020000' % (d + 3))

def srd_add(a, d, base, off, nrec):
    a('s_add_u32 s%d, s%d, %s' % (d, base, off))
    a('s_addc_u32 s%d, s%d, 0' % (d + 1, base + 1))
    a('s_mov_b32 s%d, %s' % (d + 2, nrec))
    a('s_mov_b32 s%d, 0x00020000' % (d + 3))

class Stamps:
    def __init__(self, a, kidx): self.a = a; self.kidx = kidx
    def start(self):
        if not PROF: return
        self.a('s_memrealtime s[64:65]'); self.a('s_memtime s[66:67]')
    def mark(self, i, real=False):
        if not PROF: return
        assert 2 <= i < 13
        self.a('%s s[%d:%d]' % ('s_memrealtime' if real else 's_memtime', 64 + 2 * i, 65 + 2 * i))
    def flush(self, vbase, wave_sgpr='s20'):
        if not PROF: return
        a = self.a
        a('s_waitcnt vmcnt(0) lgkmcnt(0)')
        a('s_memrealtime s[94:95]')
        a('s_memtime s[92:93]')
        a('s_getreg_b32 s90, hwreg(HW_REG_XCC_ID)')
        a('s_getreg_b32 s91, hwreg(HW_REG_HW_ID)')
        a('s_lshl_b32 s90, s90, 28')
        a('s_and_b32 s91, s91, 0xfffffff')
        a('s_or_b32 s90, s90, s91')
        a('s_waitcnt lgkmcnt(0)')
        a('s_mov_b64 exec, 1')
        for i in range(16): a('v_mov_b32 v%d, s%d' % (vbase + i, 64 + 2 * i))
        a('s_lshl_b32 s96, s2, 3')
        a('s_add_u32 s96, s96, %s' % wave_sgpr)
        a('s_lshl_b32 s96, s96, 6')
        a('s_add_u32 s96, s96, %d' % (ST_OFF + self.kidx * 0x20000))
        a('v_mov_b32 v%d, s96' % (vbase + 16))
        for i in range(4):
            a('global_store_dwordx4 v%d, v[%d:%d], s[18:19] offset:%d' % (vbase + 16, vbase + 4 * i, vbase + 4 * i + 3, 16 * i))
        if DBGOUT:
            a('s_lshl_b32 s96, s2, 3'); a('s_add_u32 s96, s96, %s' % wave_sgpr)
            a('s_cmp_lg_u32 s96, %d' % (41 * 8))
            a('s_cbranch_scc1 L_END')
            for i in range(2, 15): a('v_sub_u32 v%d, v%d, v%d' % (vbase + i, vbase + i, vbase + 1))
            a('v_sub_u32 v%d, v%d, v%d' % (vbase + 15, vbase + 15, vbase))
            a('v_mov_b32 v%d, 0' % (vbase + 16))
            a('global_store_dwordx2 v%d, v[%d:%d], s[62:63] offset:8' % (vbase + 16, vbase + 2, vbase + 3))
            for i in range(1, 4):
                a('global_store_dwordx4 v%d, v[%d:%d], s[62:63] offset:%d' % (vbase + 16, vbase + 4 * i, vbase + 4 * i + 3, 16 * i))

def kstart(a, name):
    a.raw('.globl %s' % name)
    a.raw('.p2align 8')
    a.raw('.type %s,@function' % name)
    a.raw('%s:' % name)
    a.reset()

def kdesc(name, vgpr, sgpr):
    acc = (vgpr + 3) // 4 * 4
    if PROF: sgpr = 102
    return '''.p2align 6
.amdhsa_kernel %s
  .amdhsa_next_free_vgpr %d
  .amdhsa_next_free_sgpr %d
  .amdhsa_accum_offset %d
  .amdhsa_group_segment_fixed_size 0
  .amdhsa_kernarg_size 112
  .amdhsa_user_sgpr_count 2
  .amdhsa_user_sgpr_kernarg_segment_ptr 1
  .amdhsa_system_sgpr_workgroup_id_x 1
  .amdhsa_float_denorm_mode_32 3
.end_amdhsa_kernel
''' % (name, vgpr, sgpr, acc)

def outpath():
    return sys.argv[1] if len(sys.argv) > 1 and not sys.argv[1].startswith('--') else 'cdna_kernels/%s.s' % NAME
```

```python
from common import *

NH = opt('nh', 16); NHA = opt('nha', 8); PSTEP = opt('pstep', 50)
ENGQ = opt('engq', 3); ENGA = opt('enga', 2); ENGG0 = opt('engg0', 1)
PH1 = opt('ph1', 0)
PX_OFF = 0x1000000
KN = NAME + '_kernel'

SLOT = [49152, 0, 114688]
SP = 98304
CONV = 114688
PU = 1088; PS = 16 * PU
PART = 49152
CS = 4160; URL = 4 * CS; CHS = URL + 4608
TW = CONV + 2 * CHS
W_HA, W_HB, W_W0, W_Z, W_PAIR, W_W1, W_P, W_G2, W_R6, W_KV, W_X, W_R7 = 0, 4, 8, 12, 16, 32, 36, 40, 44, 48, 52, 56
OMG = TW + 256
KST = 114688; VSTG = KST + 9216; SKS = VSTG + 8192
LDS = 163840
SPINMAX = 200000
def wd_unit(k): return SP + 4096 * k if k < 4 else (SLOT[0] + 4096 * (k - 4) if k < 16 else 4096 * (k - 16))
def flag_off(kind): return FL_OFF + kind * 32768

def gen(a):
    kstart(a, KN)
    a('s_cmp_ge_u32 s2, 256')
    a('s_cbranch_scc1 L_END')
    S = Stamps(a, 0); S.start()
    def M(i, ph1=False):
        if bool(PH1) == ph1: S.mark(i)
    a('s_load_dwordx8 s[4:11], s[0:1], 0')
    a('s_load_dwordx8 s[24:31], s[0:1], 56')
    a('s_load_dwordx4 s[12:15], s[0:1], 32')
    a('s_load_dwordx4 s[60:63], s[0:1], 88')
    a('s_load_dwordx2 s[18:19], s[0:1], 104')
    a('s_lshr_b32 s22, s2, 3')
    a('s_getpc_b64 s[50:51]')
    a.label('L_PC0')
    a('s_lshl_b32 s48, s22, 10')
    a('v_lshl_add_u32 v2, v0, 7, s48')
    a('v_min_u32 v2, L_LAST-L_PC0, v2')
    a('v_cmp_gt_u32 vcc, 8, v0')
    a('s_and_saveexec_b64 s[52:53], vcc')
    a('s_cbranch_execz L_NOCT')
    a('global_load_dword v250, v2, s[50:51]')
    a.label('L_NOCT')
    a('s_mov_b64 exec, s[52:53]')
    a('v_lshrrev_b32 v1, 6, v0')
    a('v_and_b32 v0, 63, v0')
    a('v_readfirstlane_b32 s20, v1')
    a('s_and_b32 s21, s2, 7')
    a('s_lshr_b32 s16, s21, 1')
    a('s_lshl_b32 s16, s16, 2')
    a('s_and_b32 s48, s22, 3')
    a('s_add_u32 s16, s16, s48')
    a('s_and_b32 s3, s21, 1')
    a('s_mul_i32 s17, s3, 7')
    a('s_lshr_b32 s48, s22, 2')
    a('s_add_u32 s17, s17, s48')
    a('s_sub_u32 s17, s17, 1')
    a('s_lshl_b32 s59, s21, 5')
    a('s_add_u32 s59, s59, s22')
    a('s_and_b32 s23, s20, 3')
    a('s_cmp_lt_u32 s20, 4')
    a('s_cbranch_scc1 L_COMPUTE')
    a('s_cmp_lt_u32 s22, 4')
    a('s_cbranch_scc1 L_SPARE')

    uniq = [0]
    def lab(p):
        uniq[0] += 1; return '%s%d' % (p, uniq[0])

    def lds_spin(vaddr, off, val, vtmp, sleep=1):
        L = lab('L_SPIN'); D = lab('L_SPUN')
        a('s_mov_b32 s49, 0')
        a.label(L)
        a('ds_read_b32 v%d, v%d offset:%d' % (vtmp, vaddr, off))
        a('s_waitcnt lgkmcnt(0)')
        a('v_readfirstlane_b32 s48, v%d' % vtmp)
        a('s_cmp_ge_u32 s48, %d' % val)
        a('s_cbranch_scc1 %s' % D)
        if sleep: a('s_sleep %d' % sleep)
        a('s_add_u32 s49, s49, 1')
        a('s_cmp_lt_u32 s49, %d' % (SPINMAX * 16))
        a('s_cbranch_scc1 %s' % L)
        a.label(D); a.reset()

    def lds_add(vaddr, off, vone, rtn=None):
        a('s_mov_b64 exec, 1')
        if rtn is None: a('ds_add_u32 v%d, v%d offset:%d' % (vaddr, vone, off))
        else: a('ds_add_rtn_u32 v%d, v%d, v%d offset:%d' % (rtn, vaddr, vone, off))
        a('s_mov_b64 exec, -1')

    def flag_store(kind, vaddr, vf):
        a('s_lshl_b32 s48, s59, 7')
        a('s_add_u32 s48, s48, %d' % flag_off(kind))
        a('v_mov_b32 v%d, s48' % vaddr)
        a('v_mov_b32 v%d, s56' % vf)
        a('v_mov_b32 v%d, s57' % (vf + 1))
        a('s_mov_b64 exec, 1')
        a('global_store_dwordx2 v%d, v[%d:%d], s[18:19] sc1' % (vaddr, vf, vf + 1))
        a('s_mov_b64 exec, -1')

    def join_flag(vw, vone, word, last, kind, vt):
        lds_add(vw, word, vone, rtn=vt)
        a('s_waitcnt lgkmcnt(0)')
        a('v_readfirstlane_b32 s48, v%d' % vt)
        L = lab('L_NOF')
        a('s_cmp_lg_u32 s48, %d' % last)
        a('s_cbranch_scc1 %s' % L)
        flag_store(kind, vt + 2, vt)
        a.label(L)

    def flag_poll(vaddr, vd, sleep, loaded=False):
        L = lab('L_POLL'); C = lab('L_POLC'); D = lab('L_POLD')
        a('s_mov_b32 s49, 0')
        if loaded: a('s_branch %s' % C)
        a.label(L)
        a('global_load_dwordx2 v[%d:%d], v%d, s[18:19] sc1' % (vd, vd + 1, vaddr))
        a('s_waitcnt vmcnt(0)')
        a.label(C)
        a('v_cmp_ne_u64 vcc, s[56:57], v[%d:%d]' % (vd, vd + 1))
        a('s_cmp_eq_u64 vcc, 0')
        a('s_cbranch_scc1 %s' % D)
        a('s_sleep %d' % sleep)
        a('s_add_u32 s49, s49, 1')
        a('s_cmp_lt_u32 s49, %d' % SPINMAX)
        a('s_cbranch_scc1 %s' % L)
        a.label(D); a.reset()

    def sflag_loads(pairs, soff):
        for i, p in enumerate(pairs):
            a('s_load_dwordx2 s[%d:%d], s[18:19], %s offset:%d' % (p, p + 1, soff, 128 * i))
    def sflag_check(pairs, soff, vt, sleep):
        D = lab('L_SPD')
        a('s_waitcnt lgkmcnt(0)')
        a('s_xor_b64 s[50:51], s[%d:%d], s[56:57]' % (pairs[0], pairs[0] + 1))
        for p in pairs[1:]:
            a('s_xor_b64 s[%d:%d], s[%d:%d], s[56:57]' % (p, p + 1, p, p + 1))
            a('s_or_b64 s[50:51], s[50:51], s[%d:%d]' % (p, p + 1))
        a('s_cmp_eq_u64 s[50:51], 0')
        a('s_cbranch_scc1 %s' % D)
        a('v_and_b32 v%d, 7, v0' % (vt + 2))
        a('v_lshl_add_u32 v%d, v%d, 7, %s' % (vt + 2, vt + 2, soff))
        flag_poll(vt + 2, vt, sleep)
        a.label(D); a.reset()

    def tag_load(): a('s_load_dwordx2 s[56:57], s[62:63], 0')
    def tag_get(vt):
        L = lab('L_TAG'); D = lab('L_TAGD')
        a('s_waitcnt lgkmcnt(0)')
        a('s_cmp_lg_u32 s56, 0')
        a('s_cbranch_scc1 %s' % D)
        a('s_mov_b32 s49, 0')
        a('v_mov_b32 v%d, 0' % (vt + 2))
        a.label(L)
        a('s_sleep 8')
        a('global_load_dwordx2 v[%d:%d], v%d, s[62:63] sc1' % (vt, vt + 1, vt + 2))
        a('s_waitcnt vmcnt(0)')
        a('v_readfirstlane_b32 s56, v%d' % vt)
        a('v_readfirstlane_b32 s57, v%d' % (vt + 1))
        a('s_add_u32 s49, s49, 1')
        a('s_cmp_lt_u32 s49, %d' % SPINMAX)
        a('s_cselect_b32 s48, s56, 1')
        a('s_cmp_eq_u32 s48, 0')
        a('s_cbranch_scc1 %s' % L)
        a('s_nop 4')
        a.label(D); a.reset()

    def wd_addr(V):
        a('v_lshrrev_b32 v%d, 3, v0' % V)
        a('v_lshlrev_b32 v%d, 10, v%d' % (V, V))
        a('v_bfe_u32 v%d, v0, 4, 1' % (V + 1))
        a('v_lshlrev_b32 v%d, 2, v%d' % (V + 1, V + 1))
        a('v_and_b32 v%d, 7, v0' % (V + 2))
        a('v_xor_b32 v%d, v%d, v%d' % (V + 1, V + 1, V + 2))
        a('v_lshl_add_u32 v%d, v%d, 4, v%d' % (V, V + 1, V))
        a('v_add_u32 v%d, 15360, v%d' % (V + 1, V))
        a('v_add_u32 v%d, %d, v%d' % (V + 2, 448 * 1024 - 2048, V))
        a('v_add_u32 v%d, %d, v%d' % (V + 3, 448 * 1024 - 2048 + 15360, V))
    def wd_srd(srdn):
        a('s_mul_i32 s48, s3, %d' % (896 * 1024))
        a('s_lshr_b32 s49, s22, 2')
        a('s_lshl_b32 s49, s49, 7')
        a('s_add_u32 s48, s48, s49')
        a('s_sub_u32 s49, %d, s48' % (1792 * 1024))
        srd_add(a, srdn, 28, 's48', 's49')
    def wd_group(V, srdn, k0, vm=None, tag=None):
        a('s_lshr_b32 s48, s23, 1')
        a('s_lshl_b32 s48, s48, 15')
        a('s_and_b32 s49, s23, 1')
        a('s_lshl_b32 s49, s49, 13')
        a('s_add_u32 s48, s48, s49')
        a('s_add_u32 s49, s48, %d' % (k0 * 16384))
        a('s_lshl_b32 s48, s23, 12')
        a('s_add_u32 m0, s48, %d' % wd_unit(k0))
        for i in range(4):
            a('buffer_load_dwordx4 v%d, s[%d:%d], s49 offen offset:%d lds' % (V + i, srdn, srdn + 3, 1024 * i))
            if vm: vm.issue(tag)

    def kv_dma(vm=None):
        a('v_lshrrev_b32 v16, 3, v0')
        a('v_lshlrev_b32 v16, 10, v16')
        a('v_and_b32 v17, 7, v0')
        a('v_lshl_add_u32 v16, v17, 4, v16')
        a('v_add_u32 v17, 7168, v16')
        a('s_lshl_b32 s50, s22, 16')
        a('s_lshl_b32 s51, s21, 7')
        a('s_add_u32 s50, s50, s51')
        A = lab('L_KD'); B = lab('L_KD')
        a('s_cmp_eq_u32 s23, 1')
        a('s_cbranch_scc1 %s' % A)
        srd(a, 44, 's6', 's7', 2048 * 1024)
        a('s_cmp_lg_u32 s23, 0')
        a('s_cbranch_scc1 %s' % B)
        a('s_sub_u32 s51, s50, 8192')
        a('v_add_u32 v18, s51, v16')
        a('v_cmp_gt_u32 vcc, 40, v0')
        a('v_cndmask_b32 v18, v18, -1, vcc')
        a('s_mov_b32 m0, %d' % KST)
        a('buffer_load_dwordx4 v18, s[44:47], 0 offen lds')
        a('s_branch %s' % B)
        a.label(A); a.reset()
        a('s_lshl_b32 s51, s21, 9')
        srd_add(a, 44, 10, 's51', 512)
        a('v_lshlrev_b32 v18, 4, v0')
        a('s_mov_b32 m0, %d' % SKS)
        a('buffer_load_dwordx4 v18, s[44:47], 0 offen lds')
        srd(a, 44, 's6', 's7', 2048 * 1024)
        a.label(B); a.reset()
        srd(a, 52, 's8', 's9', 2048 * 1024)
        a('s_lshl_b32 s51, s23, 14')
        a('s_add_u32 s50, s50, s51')
        a('s_lshl_b32 s51, s23, 11')
        a('s_add_u32 m0, s51, %d' % (KST + 1024))
        a('buffer_load_dwordx4 v16, s[44:47], s50 offen lds')
        a('buffer_load_dwordx4 v17, s[44:47], s50 offen offset:1024 lds')
        a('s_add_u32 m0, s51, %d' % VSTG)
        a('buffer_load_dwordx4 v16, s[52:55], s50 offen lds')
        a('buffer_load_dwordx4 v17, s[52:55], s50 offen offset:1024 lds')
        if vm:
            for _ in range(4): vm.issue('kv')

    def ur_addr():
        a('s_lshl_b32 s48, s23, 11')
        a('s_add_u32 s48, s48, %d' % SP)
        a('v_lshl_add_u32 v40, v0, 4, s48')
        a('s_lshl_b32 s48, s21, 18')
        a('s_lshl_b32 s49, s23, 16')
        a('s_add_u32 s48, s48, s49')
        a('s_lshl_b32 s49, s22, 7')
        a('s_sub_u32 s48, s48, s49')
        a('s_add_u32 s48, s48, %d' % (UR_OFF + 248 * 16))
        a('v_and_b32 v41, 7, v0')
        a('v_lshrrev_b32 v42, 4, v0')
        a('v_xor_b32 v41, v41, v42')
        a('v_xor_b32 v41, 7, v41')
        a('v_lshlrev_b32 v41, 4, v41')
        a('v_lshrrev_b32 v42, 3, v0')
        a('v_lshl_add_u32 v41, v42, 12, v41')
        a('v_add_u32 v41, s48, v41')
        a('v_xor_b32 v42, 64, v41')
        a('v_add_u32 v42, 32768, v42')
    def ur_read():
        a('ds_read_b128 v[44:47], v40')
        a('ds_read_b128 v[48:51], v40 offset:1024')
    def ur_store(vm=None):
        a('s_waitcnt lgkmcnt(0)')
        a('global_store_dwordx4 v41, v[44:47], s[18:19] sc1')
        a('global_store_dwordx4 v42, v[48:51], s[18:19] sc1')
        tag_load()
        if vm:
            for _ in range(2): vm.issue('u')

    VT, VF_, VMY, VPA, VW_, VONE = 216, 217, 218, 219, 220, 221
    VXS, VXR, VKV, VZG, VZS = 222, 223, 224, 225, 226
    VQR, VZT, VZ0, VZ1, VG, VOM, VPS, VPX = 227, 228, 229, 230, 231, 232, 233, 234
    R = [16, 24]
    def conv_scalars():
        a('s_lshr_b32 s52, s23, 1')
        a('s_and_b32 s53, s23, 1')
        a('s_lshl_b32 s54, s59, 1')
        a('s_add_u32 s54, s54, s52')
        a('s_lshl_b32 s54, s54, 12')
        a('s_mul_i32 s55, s52, %d' % CHS)
        a('s_add_u32 s55, s55, %d' % CONV)
        a('s_mul_i32 s58, s53, %d' % (2 * CS))
        a('s_add_u32 s58, s58, s55')
    def conv_addr1():
        a('s_lshl_b32 s48, s53, 11')
        a('v_lshl_add_u32 v64, v0, 4, s48')
        a('v_subrev_u32 v65, 8, v64')
        a('v_add_u32 v66, 1016, v64')
        a('s_add_u32 s48, s54, %d' % UR_OFF)
        a('v_add_u32 v67, s48, v64')
        a('s_add_u32 s48, s55, 32')
        a('v_add_u32 v78, s48, v64')
        a('s_add_u32 s48, s54, %d' % ZT_OFF)
        a('v_add_u32 v%d, s48, v64' % VZG)
        a('v_lshrrev_b32 v76, 1, v0')
        a('v_mul_u32_u24 v76, %d, v76' % CS)
        a('v_and_b32 v77, 1, v0')
        a('v_lshl_add_u32 v76, v77, 4, v76')
        a('v_subrev_u32 v77, 8, v0')
        a('v_and_b32 v77, 31, v77')
        a('v_lshlrev_b32 v77, 4, v77')
        a('v_add_u32 v77, %d, v77' % (URL + 4096))
        a('v_cmp_gt_u32 vcc, 8, v0')
        a('v_cndmask_b32 v76, v77, v76, vcc')
        a('v_add_u32 v76, s55, v76')
        for i in range(4): a('v_mov_b32 v%d, 0' % (32 + i))
        a('v_min_u32 v79, 3, v0')
        a('v_lshlrev_b32 v79, 4, v79')
        a('v_add_u32 v79, %d, v79' % TW)
    def conv_addr2():
        a('v_not_b32 v56, v0')
        a('v_and_b32 v56, 3, v56')
        a('v_mul_u32_u24 v56, %d, v56' % CS)
        a('v_lshrrev_b32 v57, 4, v0')
        a('v_lshl_add_u32 v56, v57, 4, v56')
        a('v_bfe_u32 v58, v0, 2, 2')
        a('v_lshl_add_u32 v56, v58, 3, v56')
        a('s_lshl_b32 s48, s53, 8')
        a('s_add_u32 s48, s48, s55')
        a('s_add_u32 s49, s48, 8')
        a('v_add_u32 v%d, s49, v56' % VT)
        a('v_and_b32 v58, 15, v0')
        a('v_lshlrev_b32 v58, 5, v58')
        a('v_lshlrev_b32 v56, 4, v57')
        a('v_sub_u32 v56, v56, v58')
        a('s_add_u32 s49, s48, %d' % (URL + 480))
        a('v_add_u32 v%d, s49, v56' % VF_)
        a('v_mov_b32 v%d, %d' % (VW_, TW))
        a('v_mov_b32 v%d, 1' % VONE)
        a('s_lshl_b32 s48, s23, 2')
        a('s_add_u32 s48, s48, %d' % (TW + W_PAIR))
        a('v_mov_b32 v%d, s48' % VMY)
        a('v_xor_b32 v%d, 4, v%d' % (VPA, VMY))
        a('s_lshl_b32 s48, s55, 1')
        a('s_sub_u32 s48, s48, s58')
        a('s_add_u32 s48, s48, %d' % (2 * CS))
        a('v_lshl_add_u32 v%d, v0, 4, s48' % VXS)
        a('v_lshl_add_u32 v%d, v0, 4, s58' % VXR)
        a('s_lshl_b32 s48, s53, 11')
        a('s_sub_u32 s48, s55, s48')
        a('s_add_u32 s48, s48, %d' % (URL + 4088 - 1536))
        a('v_lshl_add_u32 v56, v57, 3, v58')
        a('v_sub_u32 v%d, s48, v56' % VKV)
        a('v_add_u32 v%d, s58, v56' % VZS)
    def conv_addr3():
        a('s_lshl_b32 s50, s16, 1')
        a('s_add_u32 s50, s50, s3')
        a('s_lshl_b32 s50, s50, 1')
        a('s_add_u32 s50, s50, s52')
        a('s_lshr_b32 s51, s22, 2')
        a('s_lshl_b32 s51, s51, 1')
        a('s_add_u32 s51, s51, s53')
        a('v_and_b32 v56, 31, v0')
        a('v_lshrrev_b32 v57, 5, v0')
        a('v_lshlrev_b32 v58, 6, v56')
        a('v_lshl_add_u32 v58, v57, 3, v58')
        a('v_add_u32 v%d, s58, v58' % VQR)
        a('s_lshl_b32 s48, s50, 7')
        a('s_add_u32 s48, s48, %d' % GL_OFF)
        a('v_lshl_add_u32 v%d, v56, 2, s48' % VG)
        a('s_lshl_b32 s48, s52, 7')
        a('s_add_u32 s48, s48, %d' % OMG)
        a('v_lshl_add_u32 v%d, v56, 2, s48' % VOM)
        a('v_bfe_u32 v58, v0, 2, 2')
        a('v_lshl_add_u32 v58, v57, 2, v58')
        a('v_lshlrev_b32 v58, 6, v58')
        a('v_bfe_u32 v56, v0, 4, 1')
        a('v_lshl_add_u32 v58, v56, 5, v58')
        a('v_and_b32 v56, 3, v0')
        a('v_lshl_add_u32 v58, v56, 3, v58')
        a('v_add_u32 v%d, s58, v58' % VZT)
        a('v_lshrrev_b32 v57, 2, v0')
        a('v_lshlrev_b32 v56, 4, v56')
        a('s_lshl_b32 s48, s51, 17')
        a('s_lshl_b32 s49, s50, 6')
        a('s_add_u32 s48, s48, s49')
        a('s_add_u32 s48, s48, %d' % ZT_OFF)
        a('v_lshl_add_u32 v58, v57, 12, v56')
        a('v_add_u32 v%d, s48, v58' % VZ0)
        a('v_add_u32 v%d, 65536, v%d' % (VZ1, VZ0))
        a('s_lshl_b32 s48, s50, 15')
        a('s_lshl_b32 s49, s51, 6')
        a('s_add_u32 s48, s48, s49')
        a('v_lshl_add_u32 v58, v57, 10, v56')
        a('v_add_u32 v59, s48, v58')
        a('v_add_u32 v60, 16384, v59')
        a('s_mul_i32 s48, s52, %d' % (2 * CS))
        a('s_lshl_b32 s49, s53, 12')
        a('s_add_u32 s48, s48, s49')
        a('s_add_u32 s48, s48, %d' % CONV)
        a('v_lshl_add_u32 v%d, v0, 4, s48' % VPS)
        a('s_lshl_b32 s48, s59, 14')
        a('s_lshl_b32 s49, s23, 12')
        a('s_add_u32 s48, s48, s49')
        a('s_add_u32 s48, s48, %d' % PX_OFF)
        a('v_lshl_add_u32 v%d, v0, 4, s48' % VPX)
    FP = [0, 6, 8, 10, 24, 26, 30, 44]
    def urflag_load():
        a('s_lshl_b32 s46, s21, 12')
        a('s_lshl_b32 s49, s23, 10')
        a('s_add_u32 s46, s46, s49')
        a('s_add_u32 s46, s46, %d' % flag_off(0))
        sflag_loads(FP, 's46')
    def ssm_loads(vm=None):
        srd_add(a, 40, 12, 's54', 4096)
        a('buffer_load_dwordx2 v[%d:%d], v65, s[40:43], 0 offen' % (R[0], R[0] + 1))
        a('buffer_load_dwordx4 v[%d:%d], v64, s[40:43], 0 offen' % (R[0] + 2, R[0] + 5))
        a('buffer_load_dwordx2 v[%d:%d], v66, s[40:43], 0 offen' % (R[1], R[1] + 1))
        a('buffer_load_dwordx4 v[%d:%d], v64, s[40:43], 0 offen offset:1024' % (R[1] + 2, R[1] + 5))
        a('global_load_dwordx4 v[208:211], v59, s[4:5]')
        a('global_load_dwordx4 v[212:215], v60, s[4:5]')
        if vm:
            for _ in range(6): vm.issue('s')
    def d_load():
        a('s_lshl_b32 s48, s59, 2')
        a('s_load_dword s17, s[14:15], s48')
    def ur_loads(vm=None):
        a('global_load_dwordx4 v[68:71], v67, s[18:19] sc1')
        a('global_load_dwordx4 v[72:75], v67, s[18:19] offset:1024 sc1')
        if vm:
            vm.issue('r'); vm.issue('r')

    VX = 2; VW = 6; VWD = 12
    a('s_setprio %d' % opt('lprio', 2))
    a('v_lshrrev_b32 v10, 3, v0')
    a('v_lshlrev_b32 v10, 10, v10')
    a('v_and_b32 v11, 7, v0')
    a('v_lshrrev_b32 v12, 4, v0')
    a('v_xor_b32 v11, v11, v12')
    a('v_lshl_add_u32 v10, v11, 4, v10')
    a('s_lshl_b32 s49, s3, 1')
    a('s_xor_b32 s49, s49, s23')
    a('s_xor_b32 s49, s49, 2')
    a('s_lshl_b32 s49, s49, 15')
    a('v_add_u32 v%d, s49, v10' % VX)
    a('v_xor_b32 v10, 64, v%d' % VX)
    a('v_add_u32 v%d, 7168, v10' % (VX + 1))
    a('v_add_u32 v%d, 14336, v%d' % (VX + 2, VX))
    a('v_add_u32 v%d, 21504, v10' % (VX + 3))
    a('v_mul_u32_u24 v10, 3584, v12')
    a('v_and_b32 v11, 15, v0')
    a('v_lshlrev_b32 v13, 2, v12')
    a('v_xor_b32 v11, v11, v13')
    a('v_lshl_add_u32 v10, v11, 4, v10')
    a('s_mul_i32 s49, s23, 57344')
    a('v_add_u32 v%d, s49, v10' % VW)
    a('v_add_u32 v%d, %d, v%d' % (VW + 1, 13312, VW))
    a('v_xor_b32 v10, 32, v10')
    a('v_add_u32 v10, s49, v10')
    a('v_add_u32 v%d, %d, v10' % (VW + 2, 13312 * 2))
    a('v_add_u32 v%d, %d, v10' % (VW + 3, 13312 * 3))
    a('s_lshl_b32 s50, s16, 17')
    a('s_lshl_b32 s51, s17, 8')
    a('s_sub_u32 s53, %d, s51' % (512 * 3584))
    a('s_waitcnt lgkmcnt(0)')
    srd_add(a, 32, 4, 's50', 131072)
    srd_add(a, 36, 24, 's51', 's53')
    srd_add(a, 40, 26, 's51', 's53')
    vm = Counter(a, 'vmcnt', 63)
    def group(gi):
        n, reg = divmod(gi, 3); slot = n % 3
        V, Sr = [(VX, 32), (VW, 36), (VW, 40)][reg]
        a('s_mov_b32 s49, %d' % (n * 128 if reg == 0 else n * 64 * 3584))
        a('s_lshl_b32 s48, s23, 12')
        a('s_add_u32 m0, s48, %d' % (SLOT[slot] + reg * 16384))
        for i in range(4):
            a('buffer_load_dwordx4 v%d, s[%d:%d], s49 offen offset:%d lds' % (V + i, Sr, Sr + 3, 1024 * i))
            vm.issue('c%d' % n)
    kv_dma(vm)
    gi = 0
    for n in range(8):
        lim = min(24, 3 * (n + 1) + (2 if n < opt('lfull', 5) else 3))
        if n == 1: ur_read()
        if n == 6:
            urflag_load(); d_load()
        while gi < lim:
            group(gi); gi += 1
            if gi == 2:
                ur_addr(); conv_scalars(); conv_addr1(); conv_addr2(); conv_addr3(); wd_addr(VWD)
                vm.wait('kv')
                a('s_barrier')
        if n == 1: ur_store(vm)
        if n == 3:
            tag_get(52)
            L = lab('L_NOF')
            a('s_cmp_lg_u32 s23, 0')
            a('s_cbranch_scc1 %s' % L)
            a('s_waitcnt vmcnt(8)')
            flag_store(0, 54, 52)
            a.label(L)
        if n == 6: ssm_loads(vm)
        if n == 7:
            ur_loads(vm)
            wd_srd(32)
            wd_group(VWD, 32, 0, vm, 'w')
            a('ds_write_b128 v79, v[32:35]')
            a('s_waitcnt lgkmcnt(0)')
        vm.wait('c%d' % n)
        if n == 6: sflag_check(FP, 's46', 52, 8)
        if n in (0, 3, 6, 7): S.mark({0: 2, 3: 3, 6: 4, 7: 5}[n])
        a('s_barrier')
    a('s_setprio %d' % opt('bprio', 2))
    a('s_waitcnt vmcnt(4)')
    a.label('L_BUILD')
    a('ds_write_b128 v76, v[32:35]')
    for i in range(2):
        r = R[i]; o = 80 + 12 * i
        for j in range(4): a('v_alignbit_b32 v%d, v%d, v%d, 16' % (o + j, r + 2 + j, r + 1 + j))
        for j in range(4): a('v_mov_b32 v%d, v%d' % (o + 4 + j, r + 1 + j))
        for j in range(4): a('v_alignbit_b32 v%d, v%d, v%d, 16' % (o + 8 + j, r + 1 + j, r + j))
        a('ds_write_b128 v78, v[%d:%d] offset:%d' % (r + 2, r + 5, 1024 * i))
        for sg in range(3):
            a('ds_write_b128 v78, v[%d:%d] offset:%d' % (o + 4 * sg, o + 4 * sg + 3, 1024 * i + (sg + 1) * CS))
    a('ds_write_b128 v78, v[68:71] offset:%d' % (URL - 32))
    a('ds_write_b128 v78, v[72:75] offset:%d' % (URL - 32 + 1024))
    def pair_post(k):
        a('v_mov_b32 v1, %d' % k)
        a('s_waitcnt lgkmcnt(0)')
        a('ds_write_b32 v%d, v1' % VMY)
    def pair_wait(k): lds_spin(VPA, 0, k, 1, sleep=1)
    pair_post(1)
    a('s_lshl_b32 s50, s17, 16')
    a('s_and_b32 s17, s17, 0xffff0000')
    a('s_cmp_eq_u32 s52, 0')
    a('s_cselect_b32 s17, s50, s17')
    a('s_lshr_b32 s46, s22, 2')
    a('s_lshl_b32 s46, s46, 12')
    a('s_lshl_b32 s50, s23, 10')
    a('s_add_u32 s46, s46, s50')
    a('s_add_u32 s46, s46, %d' % flag_off(2))
    a('s_setprio 0')
    lds_spin(VW_, W_R6, 4, 1, sleep=1)
    a('s_setprio %d' % opt('s0prio', 2))
    for g in range(3): wd_group(VWD, 32, 4 + 4 * g)
    a('s_setprio 0')
    pair_wait(1)
    S.mark(6)
    a('s_setprio %d' % opt('convprio', 0))
    Y = 48; TB = [80, 144]; FB = [112, 176]
    lg = Counter(a, 'lgkmcnt', 14)
    def creads(rp):
        st = rp & 1; out = []
        for i in range(8):
            t = TB[st] + 4 * i; f = FB[st] + 4 * i
            out.append(('T%d_%d' % (i, rp), 'ds_read_b64 v[%d:%d], v%d offset:%d' % (t, t + 1, VT, 512 * i + 64 * rp)))
            out.append(('T%d_%d' % (i, rp), 'ds_read_b64 v[%d:%d], v%d offset:%d' % (t + 2, t + 3, VT, 512 * i + 64 * rp + 8)))
            out.append(('F%d_%d' % (i, rp), 'ds_read_b128 v[%d:%d], v%d offset:%d' % (f, f + 3, VF_, 3584 - 512 * i + 64 * rp)))
        return out
    for tag, t in creads(0):
        a(t); lg.issue(tag)
    pairs = sorted([(c, nu) for c in range(8) for nu in range(8) if c + nu <= 7], key=lambda p: (max(p), p))
    for rp in range(4):
        st = rp & 1
        nxt = creads(rp + 1) if rp < 3 else [('k', 'ds_read_b64 v[%d:%d], v%d offset:%d' % (112 + 2 * i, 113 + 2 * i, VKV, 1536 - 512 * i)) for i in range(4)]
        seen = set()
        for pi, (c, nu) in enumerate(pairs):
            lg.wait(['T%d_%d' % (c, rp), 'F%d_%d' % (nu, rp)])
            A = c + nu; d = Y + 4 * A
            C = '0' if (rp == 0 and A not in seen) else 'v[%d:%d]' % (d, d + 3)
            seen.add(A)
            t = TB[st] + 4 * c; f = FB[st] + 4 * nu
            a('v_mfma_f32_16x16x32_bf16 v[%d:%d], v[%d:%d], v[%d:%d], %s' % (d, d + 3, t, t + 3, f, f + 3, C))
            if nxt and not (rp == 0 and len(lg.q) > 8):
                tag, tx = nxt.pop(0); a(tx); lg.issue(tag)
            if rp == 3 and pi == 8:
                pair_post(2); lg.q = []; lg.issue('x')
        while nxt:
            tag, tx = nxt.pop(0); a(tx); lg.issue(tag)
        if rp == opt('w0rp', 1):
            a('s_waitcnt vmcnt(0)')
            lds_add(VW_, W_W0, VONE); lg.issue('x')
    S.mark(7)
    a('s_setprio %d' % opt('auxprio', 2))
    pair_wait(2)
    a('s_cmp_eq_u32 s53, 0')
    a('s_cbranch_scc1 L_SEND_HI')
    for i in range(4):
        a('ds_write_b128 v%d, v[%d:%d] offset:%d' % (VXS, Y + 4 * i, Y + 4 * i + 3, 1024 * i))
    pair_post(3)
    for i in range(16):
        a('v_mov_b32 v%d, v%d' % (Y + i, Y + 16 + i))
    a('s_branch L_SENT')
    a.label('L_SEND_HI'); a.reset()
    for i in range(4):
        a('ds_write_b128 v%d, v[%d:%d] offset:%d' % (VXS, Y + 16 + 4 * i, Y + 16 + 4 * i + 3, 1024 * i))
    pair_post(3)
    a.label('L_SENT')
    for i in range(4):
        y = Y + 4 * i; kv = 112 + 2 * i
        a('v_and_b32 v120, 0xffff0000, v%d' % (kv + 1))
        a('v_lshlrev_b32 v121, 16, v%d' % (kv + 1))
        a('v_and_b32 v122, 0xffff0000, v%d' % kv)
        a('v_lshlrev_b32 v123, 16, v%d' % kv)
        for r in range(4): a('v_fmac_f32 v%d, s17, v%d' % (y + r, 120 + r))
    pair_wait(3)
    for i in range(4):
        a('ds_read_b128 v[%d:%d], v%d offset:%d' % (96 + 4 * i, 99 + 4 * i, VXR, 1024 * i))
    for i in range(4):
        a('s_waitcnt lgkmcnt(3)')
        y = Y + 4 * i; y2 = 96 + 4 * i
        for r in range(4): a('v_add_f32 v%d, v%d, v%d' % (y + r, y + r, y2 + r))
        a('v_cvt_pk_bf16_f32 v%d, v%d, v%d' % (124 + 2 * i, y, y + 1))
        a('v_cvt_pk_bf16_f32 v%d, v%d, v%d' % (125 + 2 * i, y + 2, y + 3))
        a('ds_write_b64 v%d, v[%d:%d] offset:%d' % (VZS, 124 + 2 * i, 125 + 2 * i, 4096 + 512 * i))
    a('ds_read_b128 v[96:99], v%d offset:4096' % VXR)
    a('ds_read_b128 v[100:103], v%d offset:5120' % VXR)
    a('ds_write_b128 v%d, v[208:211]' % VXR)
    a('ds_write_b128 v%d, v[212:215] offset:1024' % VXR)
    for j in range(4):
        a('ds_read_b64 v[%d:%d], v%d offset:%d' % (40 + 2 * j, 41 + 2 * j, VQR, 16 * j))
    a('s_waitcnt lgkmcnt(7)')
    a('global_store_dwordx4 v%d, v[96:99], s[18:19] sc1' % VZG)
    a('s_waitcnt lgkmcnt(6)')
    a('global_store_dwordx4 v%d, v[100:103], s[18:19] offset:1024 sc1' % VZG)
    for g in range(3): a('v_mov_b32 v%d, s56' % (131 + 4 * g))
    a('s_waitcnt lgkmcnt(0)')
    lds_add(VW_, W_KV, VONE)
    for j in range(8):
        a('v_lshlrev_b32 v%d, 16, v%d' % (64 + 2 * j, 40 + j))
        a('v_and_b32 v%d, 0xffff0000, v%d' % (65 + 2 * j, 40 + j))
    a('s_waitcnt vmcnt(0)')
    S.mark(8)
    join_flag(VW_, VONE, W_Z, 3, 2, 24)
    a('s_setprio 0')
    lds_spin(VW_, W_P, 4, 1, sleep=1)
    a('s_setprio %d' % opt('auxprio', 2))
    S.mark(9)
    for kh in range(2):
        for i in range(4):
            a('ds_read_b128 v[%d:%d], v%d offset:%d' % (80 + 16 * kh + 4 * i, 83 + 16 * kh + 4 * i, VPS, kh * CHS + 1024 * i))
    a('s_waitcnt lgkmcnt(0)')
    lds_add(VW_, W_X, VONE)
    for r in range(16): a('v_add_f32 v%d, v%d, v%d' % (80 + r, 80 + r, 96 + r))
    for e in range(8):
        a('v_cvt_pk_bf16_f32 v%d, v%d, v%d' % (128 + 4 * (e // 3) + e % 3, 80 + 2 * e, 81 + 2 * e))
    for g in range(3):
        a('global_store_dwordx4 v%d, v[%d:%d], s[18:19] offset:%d sc1' % (VPX, 128 + 4 * g, 131 + 4 * g, 1024 * g))
    sflag_loads(FP, 's46')
    sflag_check(FP, 's46', 24, 8)
    lds_add(VW_, W_X, VONE)
    a('s_setprio 0')
    lds_spin(VW_, W_X, 12, 1, sleep=1)
    a('s_setprio %d' % opt('auxprio', 2))
    S.mark(10)
    a('global_load_dword v32, v%d, s[18:19] sc1' % VG)
    a('global_load_dwordx4 v[24:27], v%d, s[18:19] sc1' % VZ0)
    a('global_load_dwordx4 v[28:31], v%d, s[18:19] sc1' % VZ1)
    a('s_waitcnt vmcnt(2)')
    a('v_sub_f32 v33, 1.0, v32')
    a('ds_write_b32 v%d, v33' % VOM)
    for j in range(16):
        a('v_mul_f32 v%d, v32, v%d' % (64 + j, 64 + j))
    a('s_waitcnt vmcnt(0)')
    a('ds_write_b128 v%d, v[24:27] offset:4608' % VXR)
    a('ds_write_b128 v%d, v[28:31] offset:5632' % VXR)
    for j in range(4):
        a('ds_read_b64_tr_b16 v[%d:%d], v%d offset:%d' % (40 + 2 * j, 41 + 2 * j, VZT, 4608 + 512 * j))
    for j in range(8):
        if j % 2 == 0: a('s_waitcnt lgkmcnt(3)')
        a('v_lshlrev_b32 v48, 16, v%d' % (40 + j))
        a('v_and_b32 v49, 0xffff0000, v%d' % (40 + j))
        a('v_mul_f32 v%d, v48, v%d' % (64 + 2 * j, 64 + 2 * j))
        a('v_mul_f32 v%d, v49, v%d' % (65 + 2 * j, 65 + 2 * j))
        if j & 1:
            a('ds_write_b128 v%d, v[%d:%d] offset:%d' % (VXR, 62 + 2 * j, 65 + 2 * j, (j >> 1) * PU))
    a.label('L_FINAL'); a.reset()
    a('s_nop 1')
    a('s_lshr_b32 s50, s20, 2')
    a('s_lshl_b32 s49, s23, 7')
    a('s_mul_i32 s48, s50, %d' % (8 * PU))
    a('s_add_u32 s48, s48, s49')
    a('s_add_u32 s48, s48, %d' % PART)
    a('v_and_b32 v2, 7, v0')
    a('v_mul_u32_u24 v3, %d, v2' % PU)
    a('v_lshrrev_b32 v4, 3, v0')
    a('v_lshl_add_u32 v3, v4, 4, v3')
    a('v_add_u32 v3, s48, v3')
    a('s_mul_i32 s48, s50, %d' % CHS)
    a('s_add_u32 s48, s48, s49')
    a('s_add_u32 s48, s48, %d' % CONV)
    a('v_and_b32 v7, 3, v0')
    a('v_mul_u32_u24 v7, %d, v7' % PU)
    a('v_bfe_u32 v5, v0, 2, 1')
    a('v_mul_u32_u24 v5, %d, v5' % (2 * CS))
    a('v_add_u32 v7, v7, v5')
    a('v_lshl_add_u32 v7, v4, 4, v7')
    a('v_add_u32 v7, s48, v7')
    a('s_lshl_b32 s48, s20, 5')
    a('s_add_u32 s48, s48, %d' % OMG)
    a('v_lshl_add_u32 v5, v4, 2, s48')
    a('s_lshl_b32 s48, s16, 1')
    a('s_add_u32 s48, s48, s3')
    a('s_lshl_b32 s48, s48, 16')
    a('s_lshl_b32 s49, s20, 13')
    a('s_add_u32 s48, s48, s49')
    a('s_lshr_b32 s49, s22, 2')
    a('s_lshl_b32 s49, s49, 7')
    a('s_add_u32 s48, s48, s49')
    a('v_lshlrev_b32 v6, 10, v4')
    a('v_lshl_add_u32 v6, v2, 4, v6')
    a('v_add_u32 v6, s48, v6')
    a('s_waitcnt lgkmcnt(0)')
    M(11)
    a('s_barrier')
    M(12)
    for hf in range(2): a('ds_read_b128 v[%d:%d], v3 offset:%d' % (16 + 4 * hf, 19 + 4 * hf, hf * 512))
    for hf in range(2): a('ds_read_b128 v[%d:%d], v3 offset:%d' % (24 + 4 * hf, 27 + 4 * hf, PS + hf * 512))
    for hf in range(2): a('ds_read_b128 v[%d:%d], v7 offset:%d' % (32 + 4 * hf, 35 + 4 * hf, hf * 512))
    a('ds_read_b32 v8, v5')
    a('s_waitcnt lgkmcnt(3)')
    for r in range(0, 8, 2): a('v_pk_add_f32 v[%d:%d], v[%d:%d], v[%d:%d]' % (16 + r, 17 + r, 16 + r, 17 + r, 24 + r, 25 + r))
    a('s_waitcnt lgkmcnt(0)')
    for r in range(8): a('v_fmac_f32 v%d, v8, v%d' % (32 + r, 16 + r))
    for r in range(4): a('v_cvt_pk_bf16_f32 v%d, v%d, v%d' % (40 + r, 32 + 2 * r, 33 + 2 * r))
    a('global_store_dwordx4 v6, v[40:43], s[60:61]%s' % (' sc1' if opt('osc1', 0) else ''))
    S.flush(100)
    a.label('L_END')
    a('s_endpgm')

    a.label('L_SPARE'); a.reset()
    a('s_cmp_eq_u32 s20, 4')
    a('s_cbranch_scc1 L_ENG')
    for i in range(4): a('v_mov_b32 v%d, 0' % (32 + i))
    a('v_min_u32 v79, 3, v0')
    a('v_lshlrev_b32 v79, 4, v79')
    a('v_add_u32 v79, %d, v79' % TW)
    a('ds_write_b128 v79, v[32:35]')
    a('s_waitcnt lgkmcnt(0)')
    if opt('tlb', 0):
        a('s_cmp_eq_u32 s20, 6')
        a('s_cselect_b32 s50, s60, s12')
        a('s_cselect_b32 s51, s61, s13')
        a('s_cmp_eq_u32 s20, 5')
        a('s_cselect_b32 s50, s18, s50')
        a('s_cselect_b32 s51, s19, s51')
        a('s_mov_b32 s48, 8192')
        a('s_cselect_b32 s48, %d, s48' % opt('tlbs', 327680))
        a('s_lshl_b32 s49, s22, 6')
        a('v_add_u32 v2, s49, v0') if opt('tlb', 0) == 2 else a('v_mov_b32 v2, v0')
        a('v_mul_lo_u32 v2, v2, s48')
        a('global_load_dword v3, v2, s[50:51]')
    a('s_barrier')
    a('s_branch L_SP1')
    a.label('L_ENG'); a.reset()
    a('s_setprio 3')
    a('s_lshl_b32 s49, s21, 18')
    a('s_lshl_b32 s50, s22, 16')
    a('s_add_u32 s49, s49, s50')
    a('v_lshl_add_u32 v1, v0, 10, s49')
    a('v_min_u32 v2, 55, v0')
    a('v_mul_u32_u24 v3, 4682, v2')
    a('v_lshrrev_b32 v3, 16, v3')
    a('v_mul_u32_u24 v4, 14, v3')
    a('v_sub_u32 v4, v2, v4')
    a('v_mul_u32_u24 v3, 3584, v3')
    a('v_lshl_add_u32 v3, v4, 7, v3')
    a('s_mul_i32 s49, s16, %d' % (4 * 3584))
    a('s_mul_i32 s50, s3, 1792')
    a('s_add_u32 s49, s49, s50')
    a('v_add_u32 v3, s49, v3')
    a('v_and_b32 v5, 31, v0')
    a('v_lshlrev_b32 v5, 7, v5')
    a('v_lshrrev_b32 v6, 5, v0')
    a('v_mul_u32_u24 v6, %d, v6' % (448 * 1024))
    a('v_add_u32 v6, v5, v6')
    a('s_mul_i32 s49, s3, %d' % (896 * 1024))
    a('s_lshl_b32 s50, s16, 12')
    a('s_add_u32 s49, s49, s50')
    a('v_add_u32 v6, s49, v6')
    a('s_waitcnt lgkmcnt(0)')
    srd(a, 32, 's4', 's5', 2048 * 1024)
    srd(a, 36, 's24', 's25', 512 * 3584)
    srd(a, 40, 's26', 's27', 512 * 3584)
    nt = [0]
    def touch(t):
        a(t); a('s_waitcnt vmcnt(%d)' % ENGQ)
        nt[0] += 1
        if nt[0] == ENGA: a('s_barrier')
    if ENGG0: touch('buffer_load_dword v20, v3, s[36:39], 0 offen')
    touch('buffer_load_dword v20, v3, s[40:43], 0 offen')
    for c in range(1, 8):
        a('s_mov_b32 s49, %d' % (c * 64 * 3584))
        touch('buffer_load_dword v20, v1, s[32:35], 0 offen offset:%d' % (c * 128))
        touch('buffer_load_dword v20, v3, s[36:39], s49 offen')
        touch('buffer_load_dword v20, v3, s[40:43], s49 offen')
    S.mark(2)
    srd(a, 36, 's28', 's29', 1792 * 1024)
    for i in range(7):
        a('s_mov_b32 s49, %d' % (i * 65536))
        touch('buffer_load_dword v20, v6, s[36:39], s49 offen')
    a.label('L_SP1')
    a('s_setprio 3')
    conv_scalars(); conv_addr1(); conv_addr2(); conv_addr3(); wd_addr(VWD)
    a('s_barrier')
    S.mark(3)
    tag_load(); d_load()
    ssm_loads()
    tag_get(52)
    urflag_load()
    sflag_check(FP, 's46', 52, 8)
    a('s_barrier')
    S.mark(4)
    ur_loads()
    wd_srd(32)
    wd_group(VWD, 32, 0)
    a('s_waitcnt vmcnt(4)')
    a('s_branch L_BUILD')

    a.label('L_COMPUTE'); a.reset()
    XA = 224; WA = 226; VST = 230; VHS = 231; VL = 232; CW = 233; CO = 234; CWD = 235
    VTR = 239; VFA = 243; VFB = 244; VSG = 245; VPW = 246; VPL = 247
    KR = 40; VR = 51; SK = 60; KF = 64; WF = 86; VF = 94; KS = 110; OUT = 16
    a('v_lshrrev_b32 v10, 5, v0')
    a('v_and_b32 v11, 31, v0')
    a('s_lshl_b32 s51, s20, 11')
    a('v_lshlrev_b32 v12, 10, v10')
    a('v_lshl_add_u32 v12, v11, 2, v12')
    a('v_add_u32 v12, s51, v12')
    a('v_add_u32 v12, %d, v12' % KST)
    a('v_lshlrev_b32 v14, 4, v11')
    a('v_add_u32 v14, %d, v14' % SKS)
    a('s_memrealtime s[56:57]')
    a('s_waitcnt lgkmcnt(0)')
    L = lab('L_NOTAG')
    a('s_cmp_ge_u32 s22, 4')
    a('s_cbranch_scc1 L_NOSPK')
    a('s_or_b32 s48, s2, s20')
    a('s_cmp_lg_u32 s48, 0')
    a('s_cbranch_scc1 %s' % L)
    a('s_or_b32 s56, s56, 1')
    a('v_mov_b32 v2, s56')
    a('v_mov_b32 v3, s57')
    a('v_mov_b32 v1, 0')
    a('s_mov_b64 exec, 1')
    a('global_store_dwordx2 v1, v[2:3], s[62:63] sc1')
    a('s_mov_b64 exec, -1')
    a.label(L)
    a('s_barrier')
    kv_dma()
    a.label('L_NOSPK')
    a('s_lshl_b32 s51, s20, 1')
    a('v_add_u32 v10, s51, v10')
    a('v_and_b32 v15, 7, v0')
    a('v_xor_b32 v10, v10, v15')
    a('v_lshlrev_b32 v10, 4, v10')
    a('v_lshl_add_u32 v10, v11, 8, v10')
    a('v_add_u32 v24, %d, v10' % SP)
    a('s_setprio 1')
    a('v_mov_b32 v%d, v0' % VL)
    a('s_and_b32 s54, s20, 1')
    a('s_lshr_b32 s55, s20, 1')
    a('v_and_b32 v1, 15, v0')
    a('v_lshlrev_b32 v1, 7, v1')
    a('v_add_u32 v1, %d, v1' % SLOT[0])
    a('v_lshrrev_b32 v2, 4, v0')
    a('v_bfe_u32 v3, v0, 1, 3')
    a('v_xor_b32 v3, v2, v3')
    a('v_lshl_add_u32 v%d, v3, 4, v1' % XA)
    a('v_xor_b32 v%d, 64, v%d' % (XA + 1, XA))
    a('v_bfe_u32 v1, v0, 2, 2')
    a('v_lshl_add_u32 v3, v2, 3, v1')
    a('v_lshlrev_b32 v3, 8, v3')
    a('v_and_b32 v2, 1, v2')
    a('v_lshl_add_u32 v1, v1, 1, v2')
    a('s_lshl_b32 s50, s20, 1')
    a('v_xor_b32 v1, s50, v1')
    a('v_lshl_add_u32 v3, v1, 5, v3')
    a('v_and_b32 v1, 3, v0')
    a('v_lshl_add_u32 v3, v1, 3, v3')
    a('v_add_u32 v%d, %d, v3' % (WA, SLOT[0] + 16384))
    a('v_xor_b32 v%d, 32, v%d' % (WA + 1, WA))
    a('v_lshrrev_b32 v1, 4, v0')
    a('v_lshlrev_b32 v1, 9, v1')
    a('v_and_b32 v2, 15, v0')
    a('v_lshl_add_u32 v%d, v2, 4, v1' % VHS)
    a('v_lshlrev_b32 v%d, 4, v0' % VST)
    a('s_lshl_b32 s48, s16, 2')
    a('s_add_u32 s48, s48, s54')
    a('s_lshl_b32 s49, s3, 1')
    a('s_add_u32 s41, s48, s49')
    a('s_sub_u32 s40, s48, s49')
    a('s_add_u32 s40, s40, 2')
    a('s_mul_i32 s40, s40, 112')
    a('s_mul_i32 s41, s41, 112')
    a('s_mul_i32 s48, s54, 112')
    a('s_lshl_b32 s49, s17, 3')
    a('s_sub_u32 s48, s49, s48')
    a('s_lshl_b32 s49, s20, 1')
    a('s_add_u32 s48, s48, s49')
    a('s_add_u32 s8, s40, s48')
    a('s_add_u32 s10, s41, s48')
    a('s_lshl_b32 s8, s8, 10')
    a('s_lshl_b32 s10, s10, 10')
    a('s_add_u32 s9, s8, %d' % (112 * 1024))
    a('s_add_u32 s11, s10, %d' % (112 * 1024))
    a('s_mul_i32 s48, s3, 56')
    a('s_mul_i32 s49, s55, 28')
    a('s_add_u32 s48, s48, s49')
    a('s_add_u32 s42, s40, s48')
    a('s_add_u32 s43, s41, s48')
    a('s_lshl_b32 s42, s42, 10')
    a('s_lshl_b32 s43, s43, 10')
    srd_add(a, 44, 18, H_OFF, 64 * 112 * 1024)
    wd_addr(CWD); wd_srd(36)
    a('v_mov_b32 v%d, %d' % (CW, TW))
    a('v_mov_b32 v%d, 1' % CO)
    a('v_bfe_u32 v1, v0, 2, 2')
    a('v_lshrrev_b32 v2, 5, v0')
    a('v_lshl_add_u32 v2, v2, 2, v1')
    a('v_lshlrev_b32 v2, 7, v2')
    a('v_lshrrev_b32 v1, 1, v1')
    a('v_lshl_add_u32 v2, v1, 6, v2')
    a('v_bfe_u32 v1, v0, 4, 1')
    a('v_lshl_add_u32 v2, v1, 5, v2')
    a('v_and_b32 v1, 3, v0')
    a('v_lshl_add_u32 v2, v1, 3, v2')
    a('s_lshl_b32 s48, s55, 11')
    a('v_add_u32 v%d, s48, v2' % VTR)
    a('v_xor_b32 v%d, 64, v%d' % (VTR + 1, VTR))
    a('v_add_u32 v%d, 65536, v%d' % (VTR + 2, VTR))
    a('v_add_u32 v%d, 65536, v%d' % (VTR + 3, VTR + 1))
    a('s_lshl_b32 s48, s21, 5')
    a('s_and_b32 s49, s22, 3')
    a('s_add_u32 s48, s48, s49')
    a('s_lshl_b32 s48, s48, 7')
    a('s_add_u32 s50, s48, %d' % flag_off(3))
    a('v_and_b32 v2, 7, v0')
    a('v_lshl_add_u32 v%d, v2, 9, s50' % VFB)
    a('s_mul_i32 s49, s55, 1536')
    a('s_add_u32 s48, s48, s49')
    a('s_add_u32 s48, s48, %d' % (flag_off(1) + 512))
    a('v_lshl_add_u32 v%d, v1, 9, s48' % VFA)
    a('s_mul_i32 s48, s55, %d' % CHS)
    a('s_mul_i32 s49, s54, %d' % (2 * CS))
    a('s_add_u32 s48, s48, s49')
    a('s_add_u32 s48, s48, %d' % CONV)
    a('v_lshl_add_u32 v%d, v0, 4, s48' % VSG)
    a('s_mul_i32 s48, s55, %d' % PS)
    a('s_mul_i32 s49, s54, %d' % (8 * PU))
    a('s_add_u32 s48, s48, s49')
    a('s_add_u32 s48, s48, %d' % PART)
    a('v_lshl_add_u32 v%d, v0, 4, s48' % VPW)
    a('s_xor_b32 s48, s59, 32')
    a('s_lshl_b32 s48, s48, 14')
    a('s_lshl_b32 s49, s54, 13')
    a('s_add_u32 s48, s48, s49')
    a('s_lshl_b32 s49, s55, 12')
    a('s_add_u32 s48, s48, s49')
    a('s_add_u32 s48, s48, %d' % PX_OFF)
    a('v_lshl_add_u32 v%d, v0, 4, s48' % VPL)
    a('s_cmp_ge_u32 s22, 4')
    a('s_cbranch_scc1 L_BM1')
    a('s_waitcnt vmcnt(0)')
    lds_add(CW, W_R7, CO)
    lds_spin(CW, W_R7, 4, 1, sleep=1)
    a('s_branch L_BM1D')
    a.label('L_BM1'); a.reset()
    a('s_barrier')
    a.label('L_BM1D')
    a('ds_read_b128 v[%d:%d], v14' % (SK, SK + 3))
    for i in range(11):
        a('ds_read_b32 v%d, v12 offset:%d' % (KR + i, (5 + i) * 128))
    for i in range(8):
        a('ds_read_b32 v%d, v12 offset:%d' % (VR + i, VSTG - KST + i * 128))
    a('s_waitcnt lgkmcnt(8)')
    for j in range(4):
        for c in range(2):
            srcr = SK + 2 * c + (j >> 1)
            if j & 1: a('v_and_b32 v%d, 0xffff0000, v%d' % (WF + 2 * j + c, srcr))
            else: a('v_lshlrev_b32 v%d, 16, v%d' % (WF + 2 * j + c, srcr))
    for i in range(11):
        a('v_lshlrev_b32 v%d, 16, v%d' % (KF + 2 * i, KR + i))
        a('v_and_b32 v%d, 0xffff0000, v%d' % (KF + 2 * i + 1, KR + i))
    for j in (3, 2, 1, 0):
        for r in range(8):
            k = KF + 2 * (r + 3 - j); d = KS + 2 * r; w = WF + 2 * j
            if j == 3: a('v_pk_mul_f32 v[%d:%d], v[%d:%d], v[%d:%d]' % (d, d + 1, k, k + 1, w, w + 1))
            else: a('v_pk_fma_f32 v[%d:%d], v[%d:%d], v[%d:%d], v[%d:%d]' % (d, d + 1, k, k + 1, w, w + 1, d, d + 1))
    a('s_waitcnt lgkmcnt(0)')
    for i in range(8):
        a('v_lshlrev_b32 v%d, 16, v%d' % (VF + 2 * i, VR + i))
        a('v_and_b32 v%d, 0xffff0000, v%d' % (VF + 2 * i + 1, VR + i))
    for r in range(8):
        d = KS + 2 * r; v = VF + 2 * r
        a('v_pk_mul_f32 v[%d:%d], v[%d:%d], v[%d:%d]' % (d, d + 1, d, d + 1, v, v + 1))
    for c in range(2):
        for j in range(4):
            a('v_cvt_pk_bf16_f32 v%d, v%d, v%d' % (OUT + 4 * c + j, KS + 2 * (7 - 2 * j) + c, KS + 2 * (6 - 2 * j) + c))
        a('ds_write_b128 v24, v[%d:%d] offset:%d' % (OUT + 4 * c, OUT + 4 * c + 3, 128 * c))
    a('s_waitcnt lgkmcnt(0)')
    a('s_cmp_lt_u32 s22, 4')
    a('s_cbranch_scc1 L_SPC')
    a('s_barrier')
    S.mark(2)

    lg = Counter(a, 'lgkmcnt', 14)
    def acc(tb, fb, gu): return ((tb * 2 + fb) * 2 + gu) * 4
    def xr(st, tb): return 128 + 48 * st + 4 * tb
    def wr(st, gu, fb): return 128 + 48 * st + 32 + 8 * fb + 4 * gu
    steps = [(c, ks, (0, 1)) for c in range(6) for ks in range(2)]
    steps += [(c, ks, (t,)) for t in range(2) for c in (6, 7) for ks in range(2)]
    def reads(si):
        c, ks, ts = steps[si]; st = si & 1
        out = []
        def x(tb):
            r = xr(st, tb)
            out.append(('x%d_%d' % (tb, si), 'ds_read_b128 v[%d:%d], v%d offset:%d' % (r, r + 3, XA + ks, tb * 2048)))
        def w(gu, fb):
            r = wr(st, gu, fb)
            for t2 in range(2):
                out.append(('w%d%d_%d' % (gu, fb, si), 'ds_read_b64_tr_b16 v[%d:%d], v%d offset:%d' % (r + 2 * t2, r + 2 * t2 + 1, WA + fb, gu * 16384 + (32 * ks + 4 * t2) * 256)))
        tbs = [4 * t + s for t in ts for s in range(4)]
        x(tbs[0])
        for fb in range(2):
            for gu in range(2): w(gu, fb)
        for tb in tbs[1:]: x(tb)
        return out
    def epi(t):
        out = []
        for tb in range(4 * t, 4 * t + 4):
            for fb in range(2):
                g = acc(tb, fb, 0); u = acc(tb, fb, 1)
                for r in range(4): out.append('v_mul_f32 v%d, v%d, v%d' % (g + r, g + r, u + r))
            o = acc(tb, 0, 1)
            for fb in range(2):
                g = acc(tb, fb, 0)
                out.append('v_cvt_pk_bf16_f32 v%d, v%d, v%d' % (o + 2 * fb, g, g + 1))
                out.append('v_cvt_pk_bf16_f32 v%d, v%d, v%d' % (o + 2 * fb + 1, g + 2, g + 3))
            out.append('buffer_store_dwordx4 v[%d:%d], v%d, s[44:47], s%d offen offset:%d sc1' % (o, o + 3, VHS, 8 + (tb >> 1), (tb & 1) * 256))
        return out
    for tag, t in reads(0):
        a(t); lg.issue(tag)
    fill = []
    for si, (c, ks, ts) in enumerate(steps):
        st = si & 1
        last = si + 1 == len(steps)
        nxt = reads(si + 1) if not last else []
        full = len(ts) > 1
        tbs = [4 * t + s for t in ts for s in range(4)]
        order = [(tb, fb, gu) for tb in tbs for fb in range(2) for gu in range(2)]
        barrier = ks == 1 and (full or (ts == (0,) and c == 6))
        release = ks == 1 and ts == (1,)
        pre = []
        if ks == 1 and not last:
            delta = SLOT[steps[si + 1][0] % 3] - SLOT[c % 3]
            pre = ['v_add_u32 v%d, %d, v%d' % (r, delta & 0xffffffff, r) for r in list(range(XA, XA + 2)) + list(range(WA, WA + 2))]
        if (barrier and full) or release: lg.wait_all()
        if si == 2: tag_load()
        if PH1 == 2 and si >= 12: S.mark(si - 7)
        if si == 16:
            fill = epi(0)
            if opt('nost', 0): fill = [t for t in fill if not t.startswith('buffer_store')]
        hold = 2 if pre else 0
        for mi, (tb, fb, gu) in enumerate(order):
            lg.wait(['x%d_%d' % (tb, si), 'w%d%d_%d' % (gu, fb, si)])
            d = acc(tb, fb, gu); A = wr(st, gu, fb); B = xr(st, tb)
            C = '0' if si == 0 else 'v[%d:%d]' % (d, d + 3)
            a('v_mfma_f32_16x16x32_bf16 v[%d:%d], v[%d:%d], v[%d:%d], %s' % (d, d + 3, A, A + 3, B, B + 3, C))
            if release and mi == 0:
                lds_add(CW, W_R6 if c == 6 else W_R7, CO); lg.issue('rel')
            if mi < hold:
                a(pre.pop(0)); a(pre.pop(0))
                if mi == hold - 1 and barrier:
                    a('s_barrier')
                    if PH1 == 1: M(6 + c, True)
                    if PH1 == 1 and c in (2, 4): S.mark(c + 1, real=True)
                continue
            k = 0
            if nxt:
                tag, tx = nxt.pop(0); a(tx); lg.issue(tag); k = 1
            while fill and k < opt('fillper', 2):
                a(fill.pop(0)); k += 1
        assert not nxt
    for t in fill: a(t)
    print('epilogue A instructions left after the loop:', len(fill))
    S.mark(4)
    tag_get(128)
    a('s_waitcnt vmcnt(0)')
    join_flag(CW, CO, W_HA, 3, 1, 128)
    M(6)
    a('s_nop 4')
    for t in epi(1): a(t)
    M(5)
    lds_spin(CW, W_R7, 4, 132, sleep=1)
    a.label('L_S1')
    a('global_load_dwordx2 v[208:209], v%d, s[18:19] sc1' % VFA)
    a('s_waitcnt vmcnt(0)')
    join_flag(CW, CO, W_HB, 3, 3, 132)
    flag_poll(VFA, 208, 2, loaded=True)
    M(7)
    ACC = [0, 32]; WB = 64; HB = 80; PL = 212
    vm = Counter(a, 'vmcnt', 63); lg = Counter(a, 'lgkmcnt', 14)
    def issue(i):
        ph, k = divmod(i, 28); h = HB + 4 * (i % NH)
        if k % 4 == 0 and k: a('s_add_u32 s%d, s%d, 4096' % (42 + ph, 42 + ph))
        a('buffer_load_dwordx4 v[%d:%d], v%d, s[44:47], s%d offen offset:%d sc1' % (h, h + 3, VST, 42 + ph, 1024 * (k % 4))); vm.issue('h%d' % i)
    def trreads(i):
        k = i % 28; st = i & 1; u = wd_unit(k); hi = 2 if u >= 65536 - 4096 + 1 and u >= 65536 else 0
        for db in range(2):
            for t2 in range(2):
                w = WB + 8 * st + 4 * db + 2 * t2
                a('ds_read_b64_tr_b16 v[%d:%d], v%d offset:%d' % (w, w + 1, VTR + hi + db, u - (65536 if hi else 0) + t2 * 1024)); lg.issue('w%d' % i)
    def ploads(vm=None):
        for g in range(3):
            a('global_load_dwordx4 v[%d:%d], v%d, s[18:19] offset:%d sc1' % (PL + 4 * g, PL + 3 + 4 * g, VPL, 1024 * g))
            if vm: vm.issue('pl')
    for i in range(NHA): issue(i)
    nxti = NHA
    for g in range(3): wd_group(CWD, 36, 16 + 4 * g, vm, 's1')
    s1done = False
    lds_spin(CW, W_W0, 4, 210, sleep=1)
    trreads(0)
    for i in range(56):
        ph, k = divmod(i, 28); st = i & 1
        if i == 15:
            lds_spin(CW, W_W1, 4, 210, sleep=1); lg.q = []
        if i + 1 < 56: trreads(i + 1)
        vm.wait('h%d' % i)
        if not s1done and 's1' not in vm.q:
            assert i < 15
            s1done = True
            lds_add(CW, W_W1, CO); lg.issue('s1')
        lg.wait('w%d' % i)
        if i == 1: M(8)
        for db in range(2):
            d = ACC[ph] + 16 * db; w = WB + 8 * st + 4 * db; h = HB + 4 * (i % NH)
            C = '0' if k == 0 else 'v[%d:%d]' % (d, d + 15)
            a('v_mfma_f32_32x32x16_bf16 v[%d:%d], v[%d:%d], v[%d:%d], %s' % (d, d + 15, w, w + 3, h, h + 3, C))
        if i == 28:
            M(9)
            lds_spin(CW, W_KV, 4, 210, sleep=1); lg.q = []
            for u in range(8):
                a('ds_write_b128 v%d, v[%d:%d] offset:%d' % (VSG, 4 * u, 4 * u + 3, 1024 * u)); lg.issue('p')
            lds_add(CW, W_P, CO); lg.issue('p')
        if i == 44:
            lds_add(CW, W_G2, CO); lg.issue('g')
        for _ in range(2):
            if nxti < 56 and nxti <= i + (NH if i >= 28 else NHA):
                if nxti == 28 - NHA:
                    a('global_load_dwordx2 v[208:209], v%d, s[18:19] sc1' % VFB); vm.issue('fb')
                if nxti == 28:
                    vm.wait('fb')
                    flag_poll(VFB, 208, 4, loaded=True)
                issue(nxti); nxti += 1
                if nxti == 56:
                    lds_add(CW, W_X, CO); lg.issue('x')
        if i == PSTEP: ploads(vm)
    M(10)
    a('s_mov_b32 s49, 0')
    a.label('L_PCHK')
    a('s_waitcnt vmcnt(0)')
    for g in range(3): a('v_xor_b32 v%d, s56, v%d' % (PL + 3 + 4 * g, PL + 3 + 4 * g))
    a('v_or3_b32 v210, v%d, v%d, v%d' % (PL + 3, PL + 7, PL + 11))
    a('v_cmp_ne_u32 vcc, 0, v210')
    a('s_cmp_eq_u64 vcc, 0')
    a('s_cbranch_scc1 L_POK')
    a('s_add_u32 s49, s49, 1')
    a('s_cmp_ge_u32 s49, %d' % SPINMAX)
    a('s_cbranch_scc1 L_POK')
    a('s_sleep %d' % opt('pbackoff', 4))
    ploads()
    a('s_branch L_PCHK')
    a.label('L_POK'); a.reset()
    M(3)
    for e in range(8):
        p = PL + 4 * (e // 3) + e % 3
        a('v_lshlrev_b32 v%d, 16, v%d' % (2 * e, p))
        a('v_and_b32 v%d, 0xffff0000, v%d' % (2 * e + 1, p))
    a('s_cmp_eq_u32 s55, 0')
    a('s_cbranch_scc1 L_PADD0')
    for r in range(16): a('v_add_f32 v%d, v%d, v%d' % (48 + r, 48 + r, r))
    a('s_branch L_PADD1')
    a.label('L_PADD0'); a.reset()
    for r in range(16): a('v_add_f32 v%d, v%d, v%d' % (32 + r, 32 + r, r))
    a.label('L_PADD1')
    lds_spin(CW, W_G2, 4, 210, sleep=1)
    for u in range(8):
        a('ds_write_b128 v%d, v[%d:%d] offset:%d' % (VPW, 32 + 4 * u, 35 + 4 * u, u * PU))
    a('v_mov_b32 v0, v%d' % VL)
    a('s_branch L_FINAL')

    a.label('L_SPC'); a.reset()
    QR = 100; GW = 80; LG = 84
    lds_add(CW, W_R6, CO)
    ur_addr()
    lds_spin(CW, W_R6, 4, 1, sleep=1)
    ur_read()
    ur_store()
    a('s_lshl_b32 s48, s16, 1')
    a('s_add_u32 s48, s48, s3')
    a('s_lshl_b32 s48, s48, 2')
    a('s_add_u32 s50, s48, s20')
    a('s_lshl_b32 s49, s50, 14')
    srd_add(a, 32, 4, 's49', 16384)
    a('s_lshl_b32 s50, s50, 6')
    a('s_add_u32 s50, s50, %d' % GL_OFF)
    a('v_mov_b32 v10, s50')
    a('s_waitcnt vmcnt(0)')
    tag_get(52)
    join_flag(CW, CO, W_HA, 3, 0, 52)
    S.mark(2)
    a('s_barrier')
    a('global_load_dwordx4 v[%d:%d], v%d, s[30:31]' % (GW, GW + 3, VST))
    for r in range(16):
        if r % 4 == 0: a('s_mov_b32 s49, %d' % (1024 * r))
        a('buffer_load_dwordx4 v[%d:%d], v%d, s[32:35], s49 offen offset:%d' % (QR + 4 * r, QR + 4 * r + 3, VST, 1024 * (r % 4)))
    a('s_barrier')
    a('s_waitcnt vmcnt(0)')
    for r in range(16):
        a('v_dot2_f32_bf16 v%d, v%d, v%d, 0' % (LG + r, QR + 4 * r, GW))
    for i in range(1, 4):
        for r in range(16):
            a('v_dot2_f32_bf16 v%d, v%d, v%d, v%d' % (LG + r, QR + 4 * r + i, GW + i, LG + r))
    for m in ('quad_perm:[1,0,3,2] row_mask:0xf', 'quad_perm:[2,3,0,1] row_mask:0xf', 'row_half_mirror row_mask:0xf', 'row_mirror row_mask:0xf',
              'row_bcast:15 row_mask:0xa', 'row_bcast:31 row_mask:0xc'):
        for r in range(16):
            a('v_add_f32_dpp v%d, v%d, v%d %s bank_mask:0xf' % (LG + r, LG + r, LG + r, m))
    for r in range(16): a('v_mul_f32 v%d, 0xbfb8aa3b, v%d' % (LG + r, LG + r))
    for r in range(16): a('v_exp_f32 v%d, v%d' % (LG + r, LG + r))
    for r in range(16): a('v_add_f32 v%d, 1.0, v%d' % (LG + r, LG + r))
    for r in range(16): a('v_rcp_f32 v%d, v%d' % (LG + r, LG + r))
    a('s_mov_b32 exec_lo, 0')
    a('s_mov_b32 exec_hi, 0x80000000')
    for i in range(4):
        a('global_store_dwordx4 v10, v[%d:%d], s[18:19] offset:%d sc1' % (LG + 4 * i, LG + 4 * i + 3, 16 * i))
    a('s_mov_b64 exec, -1')
    S.mark(5)
    a('s_branch L_S1')
    a.label('L_LAST')
    a('s_endpgm')

def main():
    a = Asm()
    out = HEADER
    out += '; @launch grid=(256,1,1) block=(512,1,1) lds=%d\n' % LDS
    out += '.amdgcn_target "amdgcn-amd-amdhsa--gfx950"\n.text\n'
    gen(a)
    out += a.text()
    out += '.section .rodata,"a"\n' + kdesc(KN, 252, 64)
    open(outpath(), 'w').write(out)
    print('wrote', outpath(), 'nops inserted:', a.npad)

main()
```
